```python
import torch

def _softmax(x, axis=-1):
    return torch.softmax(x, dim=axis)
def _gelu(x):
    return torch.nn.functional.gelu(x, approximate="tanh")
def _silu(x):
    return torch.nn.functional.silu(x)
def _sigmoid(x):
    return torch.sigmoid(x)
def _layernorm(x, axis=-1, eps=1e-5):
    m = x.mean(dim=axis, keepdim=True)
    v = x.var(dim=axis, keepdim=True, unbiased=False)
    return (x - m) / torch.sqrt(v + eps)
def _scatter_add(tgt, idx, src, axis=0):
    return tgt.clone().index_add_(axis, idx, src)
def _segment_sum(src, seg, n):
    out = torch.zeros((n,) + src.shape[1:], dtype=src.dtype)
    return out.index_add_(0, seg, src)
def _pad(x, pw):
    flat = tuple(v for pair in reversed(pw) for v in pair)
    return torch.nn.functional.pad(x, flat)

kernel_name = 'sequential_preLN__sliding_block_cached__glu_gated_swiglu__decode'

def setup_inputs():

    _w = (lambda a: (lambda t: t.to(torch.bfloat16) if t.is_floating_point() else t)(torch.as_tensor(a)))
    def _A_setup():
        B, Sq, D = 2, 1, 576
        Hq, Hkv, Sk, Dh = 32, 16, 8192, 128
        assert Hq % Hkv == 0, (Hq, Hkv)
        return {
            "x": _w((lambda *s: torch.randn(*s, dtype=torch.bfloat16) * 0.05)(B, Sq, D)),
            "k_cache": _w((lambda *s: torch.randn(*s, dtype=torch.bfloat16) * 1.6)(B, Hkv, Sk, Dh)),
            "v_cache": _w((lambda *s: torch.randn(*s, dtype=torch.bfloat16) * 0.8)(B, Hkv, Sk, Dh)),
            "wq": _w((lambda *s: torch.randn(*s, dtype=torch.bfloat16) * 1.6)(D, Hq * Dh) * (D ** -0.5)),
            "wo": _w((lambda *s: torch.randn(*s, dtype=torch.bfloat16) * 0.8)(Hq * Dh, D) * ((Hq * Dh) ** -0.5)),
        }
    _A_in = _A_setup()

    def _B_setup():
        B, S, D, F = 2, 1, 576, 4608
        return {
            "x": _w((lambda *s: torch.randn(*s, dtype=torch.bfloat16) * 0.05)(B, S, D)),
            "w1": _w((lambda *s: torch.randn(*s, dtype=torch.bfloat16) * 0.4)(D, F) * (2.0 / D) ** 0.5),
            "w3": _w((lambda *s: torch.randn(*s, dtype=torch.bfloat16) * 0.4)(D, F) * (2.0 / D) ** 0.5),
            "w2": _w((lambda *s: torch.randn(*s, dtype=torch.bfloat16) * 0.4)(F, D) * (2.0 / F) ** 0.5),
        }
    _B_in = _B_setup()

    return {
        "A_x": _A_in["x"],
        "A_k_cache": _A_in["k_cache"],
        "A_v_cache": _A_in["v_cache"],
        "A_wq": _A_in["wq"],
        "A_wo": _A_in["wo"],
        "B_x": _B_in["x"],
        "B_w1": _B_in["w1"],
        "B_w3": _B_in["w3"],
        "B_w2": _B_in["w2"],
    }

def reference(A_x, A_k_cache, A_v_cache, A_wq, A_wo, B_x, B_w1, B_w3, B_w2):
    def _A_ref(x, k_cache, v_cache, wq, wo):
        B, Sq, D = x.shape
        Hq, Dh = 32, 128
        Hkv, Sk = k_cache.shape[1], k_cache.shape[2]
        W = min(4096, max(256, Sk // 4))
        rep = Hq // Hkv
        q = (lambda x, *d: x.permute(*d))((x @ wq).reshape(B, Sq, Hq, Dh), 0, 2, 1, 3)
        k = (lambda x, n, axis: torch.repeat_interleave(x, n, dim=axis))(k_cache[:, :, Sk - W:, :], rep, axis=1)
        v = (lambda x, n, axis: torch.repeat_interleave(x, n, dim=axis))(v_cache[:, :, Sk - W:, :], rep, axis=1)
        scores = torch.einsum("bhqd,bhkd->bhqk", q, k) * (Dh ** -0.5)
        p = _softmax(scores, axis=-1)
        o = torch.einsum("bhqk,bhkd->bhqd", p, v)
        return (lambda x, *d: x.permute(*d))(o, 0, 2, 1, 3).reshape(B, Sq, Hq * Dh) @ wo

    def _B_ref(x, w1, w3, w2):
        gate = torch.einsum("bsd,df->bsf", x, w1)
        up = torch.einsum("bsd,df->bsf", x, w3)
        h = _silu(gate) * up
        out = torch.einsum("bsf,fd->bsd", h, w2)
        return out

    x = A_x
    h = x + _A_ref(_layernorm(x, axis=-1), A_k_cache, A_v_cache, A_wq, A_wo)
    h2 = h + _B_ref(_layernorm(h, axis=-1), B_w1, B_w3, B_w2)
    return h2
```

```python
import os, re, subprocess, sys

NAME = "sequential_preLN__sliding_block_cached__glu_gated_swiglu__decode"
HERE = os.path.dirname(os.path.abspath(__file__))


class Cfg:
    D = 32
    STAMP = False
    HOPS = True
    TMO_L = 0x80000
    TMO_G = 0x8000


WS_EPOCH = 0
WS_QP = 0x1000
WS_ST = WS_QP + 0x20000
WS_OP = WS_ST + 0x2000
WS_YP = WS_OP + 0x40000
WS_HB = WS_YP + 36 * 64 * 128
WS_ZP = WS_HB + 0x2000
WS_DBG = 0x200000
WS_SIZE = 0x400000
assert WS_ZP + 36 * 144 * 128 <= WS_DBG

L_PROG = 0
L_XNF = 4
L_QF = 8
L_KD = 12
L_MX = 16
L_SUM = 32
L_HNF = 48
L_ACC1 = 128
L_ACC2 = 256
L_XN = 512
L_Q = 2816
L_P = 3328
L_O = 4480
L_GU = 4736
L_HH = 5760
L_V = 8192
L_WT = L_V + 65536
L_K = L_WT
L_WQ = L_WT + 65536
L_END = L_WQ + 18432
assert L_END <= 163840

BIAS = 64
N_WQ, N_K, N_V = 18, 64, 64
P_WQ = N_WQ
P_K0 = N_WQ
P_V0 = N_WQ + N_K
P_R0 = N_WQ + N_K + N_V

class Asm:
    def __init__(self):
        self.lines = []
        self.uid = 0

    def __call__(self, text):
        for t in text.strip().split("\n"):
            t = t.strip()
            if not t:
                continue
            if t.startswith(";"):
                self.lines.append(("c", t))
            elif t.endswith(":"):
                self.lines.append(("l", t))
            else:
                self.lines.append(("i", t))

    def lab(self, base="L"):
        self.uid += 1
        return f"{base}_{self.uid}"

    def mark(self, kind):
        self.lines.append((kind, ""))


def vr(a, n):
    return f"v[{a}:{a + n - 1}]"


def sr(a, n):
    return f"s[{a}:{a + n - 1}]"


S_WG = 2
S_WAVE = 3
S_X = 4
S_I = 5
S_TAG = 6
S_EP = 10
S_T0, S_T1, S_T2, S_T3 = 11, 12, 13, 14
S_CNT = 15
KA = 16
KA_X, KA_K, KA_V, KA_WQ, KA_WO, KA_BX, KA_W1, KA_W3, KA_W2, KA_OUT, KA_DBG, KA_WS = [16 + 2 * k for k in range(12)]
SRD_A = 40
SRD_B = 44
SRD_C = 48
SRD_WS = 52
SRD_D = 56
S_KVH = 60
S_B = 61
S_S = 62
S_R = 63
S_U0, S_U1, S_U2, S_U3 = 64, 65, 66, 67
S_M8 = 68
S_PC = 70
S_TS = 72
S_RI = 74


def build(cfg):
    a = Asm()
    D = cfg.D

    def srd(dst, ka, size):
        a(f"""
        s_mov_b32 s{dst}, s{ka}
        s_and_b32 s{dst+1}, s{ka+1}, 0xffff
        s_mov_b32 s{dst+2}, {size}
        s_mov_b32 s{dst+3}, 0x20000
        """)

    def stamp(idx, vt0, vt1):
        if not cfg.STAMP:
            return
        a(f"""
        s_memrealtime {sr(S_TS,2)}
        s_mul_i32 s76, s{S_WG}, 640
        s_lshl_b32 s77, s{S_WAVE}, 6
        s_add_u32 s76, s76, s77
        s_add_u32 s76, s76, {WS_DBG + idx*4}
        v_mov_b32 v{vt1}, 0
        s_waitcnt lgkmcnt(0)
        v_mov_b32 v{vt0}, s{S_TS}
        s_mov_b64 exec, 1
        buffer_store_dword v{vt0}, v{vt1}, {sr(SRD_WS,4)}, s76 offen
        s_mov_b64 exec, -1
        """)

    def poll_ge(off, thr, vt, vzero, sleep=1):
        L = a.lab("PL")
        O = a.lab("PO")
        a(f"s_mov_b32 s{S_CNT}, {cfg.TMO_L}")
        a(f"{L}:")
        a(f"""
        ds_read_b32 v{vt}, v{vzero} offset:{off}
        s_waitcnt lgkmcnt(0)
        v_readfirstlane_b32 s{S_T0}, v{vt}
        s_sub_u32 s{S_CNT}, s{S_CNT}, 1
        s_cbranch_scc1 {O}
        """)
        if isinstance(thr, int):
            a(f"s_cmp_ge_u32 s{S_T0}, {thr}")
        else:
            a(f"s_cmp_ge_u32 s{S_T0}, {thr}")
        a(f"s_cbranch_scc1 {O}")
        if sleep:
            a(f"s_sleep {sleep}")
        a(f"s_branch {L}")
        a(f"{O}:")

    def tags_setup():
        a(f"""
        s_add_u32 s{S_TAG}, s{S_EP}, 1
        s_mul_i32 s{S_TAG}, s{S_TAG}, 0x9E3779B1
        s_lshr_b32 s{S_TAG+1}, s{S_TAG}, 8
        s_lshr_b32 s{S_TAG+2}, s{S_TAG}, 16
        s_lshr_b32 s{S_TAG+3}, s{S_TAG}, 24
        """)

    def tag4(d, vff):
        for k in range(4):
            a(f"v_bfi_b32 v{d+k}, v{vff}, s{S_TAG+k}, v{d+k}")

    def chk4(acc, d, first):
        for k in range(4):
            if first and k == 0:
                a(f"v_xor_b32 v{acc}, s{S_TAG}, v{d}")
            else:
                a(f"v_bitop3_b32 v{acc}, v{acc}, v{d+k}, s{S_TAG+k} bitop3:0xf6")

    def chk_end(acc, retry, done, mask=0xff):
        a(f"""
        v_and_b32 v{acc}, {mask}, v{acc}
        v_cmp_ne_u32 vcc, 0, v{acc}
        s_sub_u32 s{S_CNT}, s{S_CNT}, 1
        s_cbranch_scc1 {done}
        s_cbranch_vccnz {retry}
        """)
        a(f"{done}:")

    def half_reduce(op, v, t):
        a(f"""
        s_nop 1
        v_{op}_f32_dpp v{v}, v{v}, v{v} quad_perm:[1,0,3,2] row_mask:0xf bank_mask:0xf
        s_nop 1
        v_{op}_f32_dpp v{v}, v{v}, v{v} quad_perm:[2,3,0,1] row_mask:0xf bank_mask:0xf
        s_nop 1
        v_{op}_f32_dpp v{v}, v{v}, v{v} row_half_mirror row_mask:0xf bank_mask:0xf
        s_nop 1
        v_{op}_f32_dpp v{v}, v{v}, v{v} row_mirror row_mask:0xf bank_mask:0xf
        v_mov_b32 v{t}, v{v}
        s_nop 1
        v_permlane16_swap_b32 v{v}, v{t}
        s_nop 1
        v_{op}_f32 v{v}, v{v}, v{t}
        """)

    def bf16r(dst, src):
        a(f"""
        v_cvt_pk_bf16_f32 v{dst}, v{src}, v{src}
        v_lshlrev_b32 v{dst}, 16, v{dst}
        """)

    a(f"""
    s_cmp_ge_u32 s{S_WG}, 256
    s_cbranch_scc1 L_END
    s_load_dwordx16 {sr(16,16)}, s[0:1], 0
    s_load_dwordx8 {sr(32,8)}, s[0:1], 64
    v_lshrrev_b32 v1, 6, v0
    v_and_b32 v0, 63, v0
    v_readfirstlane_b32 s{S_T1}, v1
    s_and_b32 s{S_X}, s{S_WG}, 7
    s_lshr_b32 s{S_I}, s{S_WG}, 3
    s_lshr_b32 s{S_T0}, s{S_I}, 4
    s_lshl_b32 s{S_KVH}, s{S_X}, 1
    s_add_u32 s{S_KVH}, s{S_KVH}, s{S_T0}
    s_bfe_u32 s{S_B}, s{S_I}, 0x10003
    s_and_b32 s{S_S}, s{S_I}, 7
    s_mov_b32 s{S_M8}, 0x00030003
    s_mov_b32 s{S_M8+1}, 0x00030003
    v_mov_b32 v2, 0
    s_sub_u32 s{S_WAVE}, s{S_T1}, 2
    s_sub_u32 s{S_T0}, 9, s{S_T1}
    s_cmp_lt_u32 s{S_T1}, 2
    s_cselect_b32 s{S_WAVE}, s{S_T0}, s{S_WAVE}
    s_cmp_eq_u32 s{S_WAVE}, 8
    s_cbranch_scc1 L_COMM
    s_cmp_eq_u32 s{S_WAVE}, 9
    s_cbranch_scc0 L_COMP
    """)
    VZ = 2

    VA = 4
    VKV = 8
    VF = 10
    VP = 14
    VT = 15

    def coffs(dst, pitch):
        a(f"""
        v_lshrrev_b32 v{VT}, 3, v0
        v_mul_u32_u24 v{VT}, {pitch}, v{VT}
        v_bfe_u32 v{VT+1}, v0, 4, 1
        v_lshlrev_b32 v{VT+1}, 1, v{VT+1}
        v_and_b32 v{VT+2}, 7, v0
        v_xor_b32 v{VT+1}, v{VT+1}, v{VT+2}
        v_lshl_add_u32 v{dst}, v{VT+1}, 4, v{VT}
        v_xor_b32 v{dst+1}, 64, v{dst}
        v_add_u32 v{dst+1}, {8*pitch-1024}, v{dst+1}
        v_add_u32 v{dst+2}, {2*(8*pitch-1024)}, v{dst}
        v_add_u32 v{dst+3}, {2*(8*pitch-1024)}, v{dst+1}
        """)

    def group(srdr, vo, soff, n=4):
        for j in range(n):
            off = f" offset:{1024*j}" if j else ""
            a(f"buffer_load_dwordx4 v{vo[j]}, {sr(srdr,4)}, s{soff} offen{off} nt lds")

    def report(n):
        a(f"""
        v_add_u32 v{VP}, {n}, v{VP}
        s_waitcnt vmcnt({D})
        ds_write_b32 v{VZ}, v{VP} offset:{L_PROG}
        """)

    def stream(srdr, vo, soff_step, ngroups, m0step=4096):
        L = a.lab("ST")
        a(f"s_mov_b32 s{S_U1}, {ngroups}")
        a(f"{L}:")
        group(srdr, vo, S_U0)
        a(f"""
        s_add_u32 s{S_U0}, s{S_U0}, {soff_step}
        s_add_u32 m0, m0, {m0step}
        """)
        report(4)
        a(f"""
        s_sub_u32 s{S_U1}, s{S_U1}, 1
        s_cmp_lg_u32 s{S_U1}, 0
        s_cbranch_scc1 {L}
        """)

    a("L_LOAD:")
    a("s_setprio 3")
    coffs(VA, 8192)
    a(f"""
    v_lshrrev_b32 v{VT}, 4, v0
    v_lshlrev_b32 v{VT+1}, 1, v{VT}
    v_and_b32 v{VT+2}, 15, v0
    v_xor_b32 v{VT+1}, v{VT+1}, v{VT+2}
    v_lshlrev_b32 v{VT}, 8, v{VT}
    v_lshl_add_u32 v{VKV}, v{VT+1}, 4, v{VT}
    v_xor_b32 v{VKV+1}, 128, v{VKV}
    v_mov_b32 v{VP}, {BIAS - D}
    s_lshr_b32 s{S_T0}, s{S_I}, 3
    s_mul_i32 s{S_U0}, s{S_T0}, {144*8192}
    s_lshl_b32 s{S_T0}, s{S_X}, 10
    s_add_u32 s{S_U0}, s{S_U0}, s{S_T0}
    s_lshl_b32 s{S_T0}, s{S_S}, 7
    s_add_u32 s{S_U0}, s{S_U0}, s{S_T0}
    s_lshl_b32 s{S_T1}, s{S_B}, 4
    s_add_u32 s{S_T1}, s{S_T1}, s{S_KVH}
    s_lshl_b32 s{S_T1}, s{S_T1}, 21
    s_lshl_b32 s{S_T0}, s{S_S}, 16
    s_add_u32 s{S_T1}, s{S_T1}, s{S_T0}
    s_add_u32 s{S_T1}, s{S_T1}, {6144*256}
    s_mov_b32 m0, {L_WQ}
    s_waitcnt lgkmcnt(0)
    """)
    srd(SRD_A, KA_WQ, 576 * 4096 * 2)
    va = [VA, VA + 1, VA + 2, VA + 3]
    vkv = [VKV, VKV + 1, VKV, VKV + 1]
    for g in range(5):
        group(SRD_A, va, S_U0, 4 if g < 4 else 2)
        if g < 4:
            a(f"""
            s_add_u32 m0, m0, 4096
            s_add_u32 s{S_U0}, s{S_U0}, {32*8192}
            """)
        if g == 0:
            srd(SRD_B, KA_K, 2 * 16 * 8192 * 256)
        if g == 1:
            srd(SRD_C, KA_V, 2 * 16 * 8192 * 256)
        if g == 2 and cfg.STAMP:
            srd(SRD_WS, KA_WS, WS_SIZE)
    PRE = 3
    assert N_WQ + 4 * PRE <= D
    a(f"""
    s_mov_b32 m0, {L_K}
    s_mov_b32 s{S_U0}, s{S_T1}
    """)
    for g in range(PRE):
        group(SRD_B, vkv, S_U0)
        a(f"""
        s_add_u32 m0, m0, 4096
        s_add_u32 s{S_U0}, s{S_U0}, 4096
        """)
    a(f"""
    v_add_u32 v{VP}, {N_WQ + 4*PRE}, v{VP}
    s_barrier
    """)
    stream(SRD_B, vkv, 4096, 16 - PRE)
    a(f"""
    s_mov_b32 m0, {L_V}
    s_mov_b32 s{S_U0}, s{S_T1}
    """)
    stream(SRD_C, vkv, 4096, 16)
    a(f"""
    s_cmp_ge_u32 s{S_I}, 26
    s_cbranch_scc1 L_DRAIN
    """)
    coffs(VA, 1152)
    poll_ge(L_KD, 8, VT, VZ, sleep=0)
    a(f"""
    s_cmp_ge_u32 s{S_I}, 18
    s_cbranch_scc1 L_LOADW
    v_lshrrev_b32 v{VT}, 2, v0
    v_mul_u32_u24 v{VT}, 9216, v{VT}
    v_lshrrev_b32 v{VT+1}, 5, v0
    v_lshlrev_b32 v{VT+1}, 1, v{VT+1}
    v_and_b32 v{VT+2}, 3, v0
    v_xor_b32 v{VT+1}, v{VT+1}, v{VT+2}
    v_lshl_add_u32 v{VF}, v{VT+1}, 4, v{VT}
    v_add_u32 v{VF+1}, {16*9216-1024}, v{VF}
    v_add_u32 v{VF+2}, {2*(16*9216-1024)}, v{VF}
    v_add_u32 v{VF+3}, {3*(16*9216-1024)}, v{VF}
    s_mul_i32 s{S_RI}, s{S_X}, 18
    s_add_u32 s{S_RI}, s{S_RI}, s{S_I}
    """)
    srd(SRD_A, KA_W1, 576 * 4608 * 2)
    srd(SRD_B, KA_W3, 576 * 4608 * 2)
    srd(SRD_C, KA_W2, 4608 * 576 * 2)
    vf = [VF, VF + 1, VF + 2, VF + 3]
    a(f"""
    s_lshl_b32 s{S_U0}, s{S_RI}, 6
    s_mov_b32 m0, {L_WT}
    """)
    stream(SRD_A, vf, 64 * 9216, 9)
    a(f"s_lshl_b32 s{S_U0}, s{S_RI}, 6")
    stream(SRD_B, vf, 64 * 9216, 9)
    poll_ge(L_KD, 16, VT, VZ, sleep=0)
    a(f"""
    s_mul_i32 s{S_U0}, s{S_RI}, {32*1152}
    s_mov_b32 m0, {L_V}
    """)
    stream(SRD_C, va, 128, 9)
    a("s_branch L_DRAIN")
    a("L_LOADW:")
    srd(SRD_A, KA_WO, 4096 * 576 * 2)
    a(f"""
    ; rows 512x + 64(i-18)
    s_lshl_b32 s{S_T0}, s{S_X}, 3
    s_add_u32 s{S_T0}, s{S_T0}, s{S_I}
    s_sub_u32 s{S_T0}, s{S_T0}, 18
    s_mul_i32 s{S_T1}, s{S_T0}, {64*1152}
    s_mov_b32 s{S_U0}, s{S_T1}
    s_mov_b32 m0, {L_WT}
    """)
    stream(SRD_A, va, 128, 9)
    a(f"s_add_u32 s{S_U0}, s{S_T1}, {32*1152}")
    stream(SRD_A, va, 128, 9)
    a("L_DRAIN:")
    for k in range(D - 4, -1, -4):
        a(f"""
        v_add_u32 v{VP}, 4, v{VP}
        s_waitcnt vmcnt({k})
        ds_write_b32 v{VZ}, v{VP} offset:{L_PROG}
        """)
    stamp(0, VT, VT + 1)
    a("""
    s_waitcnt lgkmcnt(0)
    s_endpgm
    """)

    VFF = 3
    VG16 = 4
    VJ1 = 5
    VTR = 6
    VTMP = 8
    VW = 16
    VB = 80
    VD = 116
    VX = 148

    def lane_setup():
        a(f"""
        v_mov_b32 v{VFF}, 0xff
        v_lshrrev_b32 v{VTMP}, 4, v0
        v_lshlrev_b32 v{VG16}, 4, v{VTMP}
        v_and_b32 v{VJ1}, 1, v0
        v_bfe_u32 v{VTMP+1}, v0, 2, 2
        v_lshl_add_u32 v{VTMP+2}, v{VTMP}, 3, v{VTMP+1}
        v_lshlrev_b32 v{VTMP+2}, 7, v{VTMP+2}
        v_bfe_u32 v{VTMP+3}, v0, 3, 1
        v_bfe_u32 v{VTMP+4}, v0, 4, 1
        v_lshl_or_b32 v{VTMP+3}, v{VTMP+4}, 1, v{VTMP+3}
        v_lshlrev_b32 v{VTMP+3}, 5, v{VTMP+3}
        v_and_b32 v{VTMP+4}, 3, v0
        v_lshl_or_b32 v{VTMP+3}, v{VTMP+4}, 3, v{VTMP+3}
        v_add_u32 v{VTR}, v{VTMP+2}, v{VTMP+3}
        """)

    def cb_frags(base_s, nks, ksstride):
        for nt in range(4):
            a(f"v_xor_b32 v{VTMP+nt}, {nt*32}, v{VTR}")
        for nt in range(4):
            a(f"v_add_u32 v{VTMP+nt}, s{base_s}, v{VTMP+nt}")
        for ks in range(nks):
            for nt in range(4):
                r = VW + (ks * 4 + nt) * 4
                a(f"ds_read_b64_tr_b16 {vr(r,2)}, v{VTMP+nt} offset:{ks*ksstride}")
                a(f"ds_read_b64_tr_b16 {vr(r+2,2)}, v{VTMP+nt} offset:{ks*ksstride+512}")

    def cb_mfma_store(nks, ws_base, nprod):
        for ks in range(nks):
            for nt in range(4):
                c = "0" if ks == 0 else vr(VD + nt * 4, 4)
                a(f"v_mfma_f32_16x16x32_bf16 {vr(VD+nt*4,4)}, {vr(VW+(ks*4+nt)*4,4)}, {vr(VB+ks*4,4)}, {c}")
        a(f"""
        s_mov_b64 exec, {sr(S_M8,2)}
        s_nop 4
        """)
        for nt in range(4):
            tag4(VD + nt * 4, VFF)
            so = S_U0 if nt < 2 else S_U1
            a(f"buffer_store_dwordx4 {vr(VD+nt*4,4)}, v{VX}, {sr(SRD_WS,4)}, s{so} offen offset:{(nt&1)*64} sc1")
        a("s_mov_b64 exec, -1")

    def cb_addr(ws_base, nprod):
        a(f"""
        v_mul_u32_u24 v{VX}, {18*nprod*128}, v{VJ1}
        v_add_u32 v{VX}, v{VX}, v{VG16}
        s_mul_i32 s{S_U0}, s{S_WAVE}, {2*nprod*128}
        s_lshl_b32 s{S_U1}, s{S_RI}, 7
        s_add_u32 s{S_U0}, s{S_U0}, s{S_U1}
        s_add_u32 s{S_U0}, s{S_U0}, {ws_base}
        s_add_u32 s{S_U1}, s{S_U0}, {nprod*128}
        """)

    def gather_reduce(ws_base, nprod, nld, lacc):
        R = a.lab("GR")
        Dn = a.lab("GD")
        a(f"""
        s_mul_i32 s{S_U0}, s{S_R}, {nprod*128}
        s_mul_i32 s{S_U1}, s{S_WAVE}, {nld*1024}
        s_add_u32 s{S_U0}, s{S_U0}, s{S_U1}
        s_add_u32 s{S_U0}, s{S_U0}, {ws_base}
        v_lshlrev_b32 v{VX}, 4, v0
        v_and_b32 v{VX+1}, 7, v0
        v_lshlrev_b32 v{VX+1}, 4, v{VX+1}
        v_lshrrev_b32 v{VX+2}, 4, v0
        v_lshl_add_u32 v{VX+1}, v{VX+2}, 2, v{VX+1}
        s_mov_b32 s{S_CNT}, {cfg.TMO_G}
        """)
        a(f"{R}:")
        for k in range(nld):
            off = f" offset:{1024*k}" if k else ""
            a(f"buffer_load_dwordx4 {vr(VB+4*k,4)}, v{VX}, {sr(SRD_WS,4)}, s{S_U0} offen{off} sc1")
        for k in range(nld):
            a(f"s_waitcnt vmcnt({nld-1-k})")
            chk4(VX + 2, VB + 4 * k, k == 0)
        chk_end(VX + 2, R, Dn)
        for k in range(1, nld):
            for d in range(4):
                a(f"v_add_f32 v{VB+d}, v{VB+d}, v{VB+4*k+d}")
        a(f"""
        s_nop 1
        v_permlane32_swap_b32 v{VB}, v{VB+2}
        v_permlane32_swap_b32 v{VB+1}, v{VB+3}
        s_nop 1
        v_add_f32 v{VB}, v{VB}, v{VB+2}
        v_add_f32 v{VB+1}, v{VB+1}, v{VB+3}
        s_nop 1
        v_permlane16_swap_b32 v{VB}, v{VB+1}
        s_nop 1
        v_add_f32 v{VB}, v{VB}, v{VB+1}
        ds_add_f32 v{VX+1}, v{VB} offset:{lacc}
        s_waitcnt lgkmcnt(0)
        """)

    def f2_stage():
        a(f"""
        s_lshl_b32 s{S_U2}, s{S_WAVE}, 12
        s_add_u32 s{S_U2}, s{S_U2}, {L_V}
        v_lshlrev_b32 v{VX+1}, 2, v0
        ds_read_b32 v{VX+2}, v{VX+1} offset:{L_GU}
        ds_read_b32 v{VX+3}, v{VX+1} offset:{L_GU+256}
        ds_read_b32 v{VX+4}, v{VX+1} offset:{L_GU+512}
        ds_read_b32 v{VX+5}, v{VX+1} offset:{L_GU+768}
        """)
        cb_frags(S_U2, 1, 0)
        a(f"""
        s_lshl_b32 s{S_U2}, s{S_WAVE}, 7
        s_add_u32 s{S_U2}, s{S_U2}, {L_HH}
        v_lshl_add_u32 v{VX+6}, v0, 1, s{S_U2}
        v_lshl_add_u32 v{VX+7}, v{VJ1}, 6, v{VG16}
        v_add_u32 v{VX+7}, s{S_U2}, v{VX+7}
        s_waitcnt lgkmcnt(8)
        v_add_f32 v{VX+2}, v{VX+2}, v{VX+3}
        v_add_f32 v{VX+4}, v{VX+4}, v{VX+5}
        v_cvt_pk_bf16_f32 v{VX+2}, v{VX+2}, v{VX+4}
        v_and_b32 v{VX+4}, 0xffff0000, v{VX+2}
        v_lshlrev_b32 v{VX+2}, 16, v{VX+2}
        v_mul_f32 v{VX+3}, 0xbfb8aa3b, v{VX+2}
        v_exp_f32 v{VX+3}, v{VX+3}
        s_nop 0
        v_add_f32 v{VX+3}, 1.0, v{VX+3}
        v_rcp_f32 v{VX+3}, v{VX+3}
        s_nop 0
        v_mul_f32 v{VX+3}, v{VX+2}, v{VX+3}
        """)
        bf16r(VX + 3, VX + 3)
        a(f"""
        v_mul_f32 v{VX+3}, v{VX+3}, v{VX+4}
        v_cvt_pk_bf16_f32 v{VX+3}, v{VX+3}, v{VX+3}
        ds_write_b16 v{VX+6}, v{VX+3}
        ds_read_b128 {vr(VB,4)}, v{VX+7}
        """)
        cb_addr(WS_ZP, 144)
        a("s_waitcnt lgkmcnt(0)")
        cb_mfma_store(1, WS_ZP, 144)

    def w_pre():
        poll_ge(L_PROG, BIAS + P_R0 + 72, VTMP, VZ, sleep=1)
        a(f"""
        s_lshl_b32 s{S_U2}, s{S_WAVE}, 12
        s_add_u32 s{S_U2}, s{S_U2}, {L_WT}
        """)
        cb_frags(S_U2, 2, 9 * 4096)
        cb_addr(WS_YP, 64)
        a(f"""
        v_lshl_add_u32 v{VX+7}, v{VJ1}, 7, v{VG16}
        s_waitcnt lgkmcnt(0)
        """)

    def w_post():
        a(f"""
        ds_read_b128 {vr(VB,4)}, v{VX+7} offset:{L_O}
        ds_read_b128 {vr(VB+4,4)}, v{VX+7} offset:{L_O+64}
        s_waitcnt lgkmcnt(0)
        """)
        cb_mfma_store(2, WS_YP, 64)

    def role_idx():
        a(f"""
        s_mul_i32 s{S_RI}, s{S_X}, 18
        s_add_u32 s{S_RI}, s{S_RI}, s{S_I}
        s_sub_u32 s{S_T0}, s{S_I}, 18
        s_lshl_b32 s{S_R}, s{S_T0}, 3
        s_add_u32 s{S_R}, s{S_R}, s{S_X}
        s_lshl_b32 s{S_T1}, s{S_X}, 3
        s_add_u32 s{S_T1}, s{S_T1}, s{S_T0}
        s_cmp_ge_u32 s{S_I}, 18
        s_cselect_b32 s{S_RI}, s{S_T1}, s{S_RI}
        """)

    a("L_COMP:")
    lane_setup()
    role_idx()
    a("s_waitcnt lgkmcnt(0)")
    srd(SRD_WS, KA_WS, WS_SIZE)
    a(f"""
    s_load_dword s{S_EP}, {sr(KA_WS,2)}, {WS_EPOCH} glc
    s_barrier
    """)
    if cfg.HOPS:
        a("s_mov_b64 exec, 0")
        for r in range(8):
            a(f"""
            s_cmp_eq_u32 s{S_WAVE}, {r}
            s_cbranch_scc1 HOPR_{r}
            """)
        a("L_RESUME:")
        a("s_mov_b64 exec, -1")
    a("s_waitcnt lgkmcnt(0)")
    tags_setup()
    stamp(0, VTMP, VTMP + 1)
    a(f"""
    s_cmp_ge_u32 s{S_WAVE}, 4
    s_cbranch_scc1 L_NOQ
    s_lshl_b32 s{S_T0}, s{S_WAVE}, 5
    v_xor_b32 v{VTMP+4}, s{S_T0}, v{VTR}
    v_add_u32 v{VTMP+4}, {L_WQ}, v{VTMP+4}
    v_lshrrev_b32 v{VTMP+1}, 2, v0
    v_lshlrev_b32 v{VTMP+5}, 7, v{VTMP+1}
    v_bfe_u32 v{VTMP+2}, v0, 3, 1
    v_bfe_u32 v{VTMP+3}, v0, 5, 1
    v_lshl_or_b32 v{VTMP+2}, v{VTMP+3}, 1, v{VTMP+2}
    v_lshlrev_b32 v{VTMP+2}, 5, v{VTMP+2}
    v_xor_b32 v{VTMP+2}, s{S_T0}, v{VTMP+2}
    v_and_b32 v{VTMP+3}, 3, v0
    v_lshl_or_b32 v{VTMP+2}, v{VTMP+3}, 3, v{VTMP+2}
    v_add3_u32 v{VTMP+5}, v{VTMP+5}, v{VTMP+2}, v{VZ}
    v_add_u32 v{VTMP+5}, {L_WQ + 128*128}, v{VTMP+5}
    s_lshr_b32 s{S_T1}, s{S_I}, 3
    s_mul_i32 s{S_T1}, s{S_T1}, 288
    v_mul_u32_u24 v{VTMP+6}, 1152, v{VJ1}
    v_add3_u32 v{VTMP+6}, v{VTMP+6}, v{VG16}, s{S_T1}
    v_lshrrev_b32 v{VTMP+7}, 1, v{VG16}
    v_sub_u32 v{VTMP+7}, v{VTMP+6}, v{VTMP+7}
    v_lshl_add_u32 v{VX}, v{VJ1}, 16, v{VG16}
    s_lshl_b32 s{S_U0}, s{S_X}, 1
    s_lshr_b32 s{S_T1}, s{S_S}, 2
    s_add_u32 s{S_U0}, s{S_U0}, s{S_T1}
    s_lshl_b32 s{S_U0}, s{S_U0}, 2
    s_lshr_b32 s{S_T1}, s{S_I}, 3
    s_add_u32 s{S_U0}, s{S_U0}, s{S_T1}
    s_lshl_b32 s{S_U0}, s{S_U0}, 10
    s_and_b32 s{S_T1}, s{S_S}, 3
    s_lshl_b32 s{S_T1}, s{S_T1}, 8
    s_add_u32 s{S_U0}, s{S_U0}, s{S_T1}
    s_lshl_b32 s{S_T1}, s{S_WAVE}, 6
    s_add_u32 s{S_U0}, s{S_U0}, s{S_T1}
    s_add_u32 s{S_U0}, s{S_U0}, {WS_QP}
    """)
    poll_ge(L_PROG, BIAS + P_WQ, VTMP, VZ, sleep=0)
    for ks in range(4):
        a(f"ds_read_b64_tr_b16 {vr(VW+ks*4,2)}, v{VTMP+4} offset:{ks*4096}")
        a(f"ds_read_b64_tr_b16 {vr(VW+ks*4+2,2)}, v{VTMP+4} offset:{ks*4096+512}")
    a(f"ds_read_b64_tr_b16 {vr(VW+16,2)}, v{VTMP+5}")
    poll_ge(L_XNF, 1, VTMP, VZ, sleep=0)
    for ks in range(4):
        a(f"ds_read_b128 {vr(VB+ks*4,4)}, v{VTMP+6} offset:{L_XN+ks*64}")
    a(f"ds_read_b64 {vr(VB+16,2)}, v{VTMP+7} offset:{L_XN+256}")
    a("s_waitcnt lgkmcnt(0)")
    for ks in range(4):
        c = "0" if ks == 0 else vr(VD, 4)
        a(f"v_mfma_f32_16x16x32_bf16 {vr(VD,4)}, {vr(VW+ks*4,4)}, {vr(VB+ks*4,4)}, {c}")
    a(f"""
    s_nop 7
    v_mfma_f32_16x16x16_bf16 {vr(VD,4)}, {vr(VW+16,2)}, {vr(VB+16,2)}, {vr(VD,4)}
    s_mov_b64 exec, {sr(S_M8,2)}
    s_nop 7
    """)
    tag4(VD, VFF)
    a(f"""
    buffer_store_dwordx4 {vr(VD,4)}, v{VX}, {sr(SRD_WS,4)}, s{S_U0} offen sc1
    s_mov_b64 exec, -1
    """)
    stamp(1, VTMP, VTMP + 1)
    a("L_NOQ:")
    a(f"""
    v_and_b32 v{VTMP+1}, 15, v0
    v_lshlrev_b32 v{VTMP+2}, 8, v{VTMP+1}
    v_and_b32 v{VTMP+1}, 7, v0
    v_lshlrev_b32 v{VTMP+1}, 5, v{VTMP+1}
    v_xor_b32 v{VTMP+1}, v{VTMP+1}, v{VG16}
    s_lshl_b32 s{S_T1}, s{S_WAVE}, 13
    s_add_u32 s{S_T1}, s{S_T1}, {L_K}
    v_add_u32 v{VTMP+2}, s{S_T1}, v{VTMP+2}
    """)
    for t in range(4):
        a(f"v_xor_b32 v{VTMP+4+t}, {t*64}, v{VTMP+1}")
    for t in range(4):
        a(f"v_add_u32 v{VTMP+4+t}, v{VTMP+4+t}, v{VTMP+2}")
    a(f"""
    s_lshl_b32 s{S_T2}, s{S_WAVE}, 3
    s_add_u32 s{S_T2}, s{S_T2}, {BIAS + P_K0 + 8}
    """)
    poll_ge(L_PROG, f"s{S_T2}", VTMP, VZ, sleep=1)
    for T in range(2):
        for t in range(4):
            a(f"ds_read_b128 {vr(VW+(T*4+t)*4,4)}, v{VTMP+4+t} offset:{T*4096}")
    a(f"""
    v_mov_b32 v{VX+1}, 1
    v_lshl_add_u32 v{VTMP+1}, v{VJ1}, 8, v{VG16}
    s_waitcnt lgkmcnt(0)
    s_mov_b64 exec, 1
    ds_add_u32 v{VZ}, v{VX+1} offset:{L_KD}
    s_mov_b64 exec, -1
    """)
    stamp(2, VTMP + 2, VTMP + 3)
    poll_ge(L_QF, 1, VTMP, VZ, sleep=1)
    stamp(3, VTMP + 2, VTMP + 3)
    for t in range(4):
        a(f"ds_read_b128 {vr(VB+t*4,4)}, v{VTMP+1} offset:{L_Q+t*64}")
    a("s_waitcnt lgkmcnt(0)")
    for t in range(4):
        for T in range(2):
            c = "0" if t == 0 else vr(VD + T * 4, 4)
            a(f"v_mfma_f32_16x16x32_bf16 {vr(VD+T*4,4)}, {vr(VW+(T*4+t)*4,4)}, {vr(VB+t*4,4)}, {c}")
    a(f"""
    s_mov_b32 s{S_T2}, 0x3db504f3
    v_lshlrev_b32 v{VTMP+2}, 2, v{VJ1}
    s_nop 6
    """)
    for k in range(0, 8, 2):
        a(f"""
        v_cvt_pk_bf16_f32 v{VTMP+4}, v{VD+k}, v{VD+k+1}
        v_lshlrev_b32 v{VD+k}, 16, v{VTMP+4}
        v_and_b32 v{VD+k+1}, 0xffff0000, v{VTMP+4}
        v_mul_f32 v{VD+k}, s{S_T2}, v{VD+k}
        v_mul_f32 v{VD+k+1}, s{S_T2}, v{VD+k+1}
        v_cvt_pk_bf16_f32 v{VTMP+4}, v{VD+k}, v{VD+k+1}
        v_lshlrev_b32 v{VD+k}, 16, v{VTMP+4}
        v_and_b32 v{VD+k+1}, 0xffff0000, v{VTMP+4}
        """)
    a(f"""
    v_max3_f32 v{VTMP+4}, v{VD}, v{VD+1}, v{VD+2}
    v_max3_f32 v{VTMP+4}, v{VTMP+4}, v{VD+3}, v{VD+4}
    v_max3_f32 v{VTMP+4}, v{VTMP+4}, v{VD+5}, v{VD+6}
    v_max_f32 v{VTMP+4}, v{VTMP+4}, v{VD+7}
    s_mov_b64 exec, {sr(S_M8,2)}
    ds_max_f32 v{VTMP+2}, v{VTMP+4} offset:{L_MX}
    s_mov_b64 exec, 1
    ds_add_u32 v{VZ}, v{VX+1} offset:{L_MX+8}
    s_mov_b64 exec, -1
    """)
    poll_ge(L_MX + 8, 8, VTMP, VZ, sleep=0)
    a(f"""
    ds_read_b32 v{VTMP+4}, v{VTMP+2} offset:{L_MX}
    s_mov_b32 s{S_T2}, 0x3fb8aa3b
    ; P address: (g*2 + (j&1))*144
    v_lshrrev_b32 v{VTMP+5}, 3, v{VG16}
    v_add_u32 v{VTMP+5}, v{VTMP+5}, v{VJ1}
    v_mul_u32_u24 v{VTMP+5}, 144, v{VTMP+5}
    s_lshl_b32 s{S_T1}, s{S_WAVE}, 4
    v_add_u32 v{VTMP+6}, s{S_T1}, v{VTMP+5}
    s_waitcnt lgkmcnt(0)
    """)
    for k in range(8):
        a(f"v_sub_f32 v{VD+k}, v{VD+k}, v{VTMP+4}")
    for k in range(8):
        a(f"v_mul_f32 v{VD+k}, s{S_T2}, v{VD+k}")
    for k in range(8):
        a(f"v_exp_f32 v{VD+k}, v{VD+k}")
    a("s_nop 0")
    for k in range(4):
        a(f"v_cvt_pk_bf16_f32 v{VB+k}, v{VD+2*k}, v{VD+2*k+1}")
    a(f"""
    v_add_f32 v{VD}, v{VD}, v{VD+1}
    v_add_f32 v{VD+2}, v{VD+2}, v{VD+3}
    v_add_f32 v{VD+4}, v{VD+4}, v{VD+5}
    v_add_f32 v{VD+6}, v{VD+6}, v{VD+7}
    v_add_f32 v{VD}, v{VD}, v{VD+2}
    v_add_f32 v{VD+4}, v{VD+4}, v{VD+6}
    v_add_f32 v{VD}, v{VD}, v{VD+4}
    s_mov_b64 exec, {sr(S_M8,2)}
    ds_write_b128 v{VTMP+6}, {vr(VB,4)} offset:{L_P}
    ds_add_f32 v{VTMP+2}, v{VD} offset:{L_SUM}
    s_mov_b64 exec, 1
    ds_add_u32 v{VZ}, v{VX+1} offset:{L_SUM+8}
    s_mov_b64 exec, -1
    v_lshrrev_b32 v{VTMP+1}, 2, v0
    v_lshlrev_b32 v{VTMP+7}, 8, v{VTMP+1}
    v_and_b32 v{VTMP+1}, 7, v{VTMP+1}
    v_lshlrev_b32 v{VTMP+1}, 5, v{VTMP+1}
    s_lshl_b32 s{S_T1}, s{S_WAVE}, 5
    v_xor_b32 v{VTMP+1}, s{S_T1}, v{VTMP+1}
    v_and_b32 v{VTMP+3}, 3, v0
    v_lshl_or_b32 v{VTMP+1}, v{VTMP+3}, 3, v{VTMP+1}
    v_add_u32 v{VTMP+7}, v{VTMP+7}, v{VTMP+1}
    v_add_u32 v{VTMP+7}, {L_V}, v{VTMP+7}
    v_lshl_add_u32 v{VX}, v{VJ1}, 13, v{VG16}
    s_lshl_b32 s{S_U0}, s{S_KVH}, 14
    s_lshr_b32 s{S_T1}, s{S_WAVE}, 2
    s_lshl_b32 s{S_T1}, s{S_T1}, 12
    s_add_u32 s{S_U0}, s{S_U0}, s{S_T1}
    s_and_b32 s{S_T1}, s{S_I}, 15
    s_lshl_b32 s{S_T1}, s{S_T1}, 8
    s_add_u32 s{S_U0}, s{S_U0}, s{S_T1}
    s_and_b32 s{S_T1}, s{S_WAVE}, 3
    s_lshl_b32 s{S_T1}, s{S_T1}, 6
    s_add_u32 s{S_U0}, s{S_U0}, s{S_T1}
    s_add_u32 s{S_U0}, s{S_U0}, {WS_OP}
    """)
    poll_ge(L_SUM + 8, 8, VTMP, VZ, sleep=0)
    for u in range(8):
        a(f"ds_read_b128 {vr(VB+u*4,4)}, v{VTMP+5} offset:{L_P+u*16}")
    stamp(4, VTMP + 2, VTMP + 3)
    first = True
    for (u0, u1) in ((0, 4), (4, 6), (6, 7), (7, 8)):
        poll_ge(L_PROG, BIAS + P_V0 + 8 * u1, VTMP, VZ, sleep=(1 if u1 < 7 else 0))
        for u in range(u0, u1):
            a(f"ds_read_b64_tr_b16 {vr(VW+u*4,2)}, v{VTMP+7} offset:{u*8192}")
            a(f"ds_read_b64_tr_b16 {vr(VW+u*4+2,2)}, v{VTMP+7} offset:{u*8192+4096}")
        for u in range(u0, u1):
            a(f"s_waitcnt lgkmcnt({2*(u1-1-u)})")
            c = "0" if first else vr(VD, 4)
            first = False
            a(f"v_mfma_f32_16x16x32_bf16 {vr(VD,4)}, {vr(VW+u*4,4)}, {vr(VB+u*4,4)}, {c}")
    a(f"""
    s_mov_b64 exec, 1
    ds_add_u32 v{VZ}, v{VX+1} offset:{L_KD}
    s_mov_b64 exec, {sr(S_M8,2)}
    s_nop 5
    """)
    tag4(VD, VFF)
    a(f"""
    buffer_store_dwordx4 {vr(VD,4)}, v{VX}, {sr(SRD_WS,4)}, s{S_U0} offen sc1
    s_mov_b64 exec, -1
    """)
    stamp(5, VTMP + 2, VTMP + 3)
    a(f"""
    s_cmp_ge_u32 s{S_I}, 26
    s_cbranch_scc1 L_END
    s_cmp_ge_u32 s{S_I}, 18
    s_cbranch_scc1 L_COMPW
    """)
    a(f"""
    v_bfe_u32 v{VTMP+1}, v0, 2, 2
    v_lshrrev_b32 v{VTMP+2}, 1, v{VG16}
    v_add_u32 v{VTMP+1}, v{VTMP+1}, v{VTMP+2}
    v_lshlrev_b32 v{VTMP+1}, 6, v{VTMP+1}
    v_bfe_u32 v{VTMP+2}, v0, 4, 1
    v_lshlrev_b32 v{VTMP+2}, 5, v{VTMP+2}
    s_bfe_u32 s{S_T1}, s{S_WAVE}, 0x10001
    s_lshl_b32 s{S_T2}, s{S_T1}, 5
    v_xor_b32 v{VTMP+2}, s{S_T2}, v{VTMP+2}
    v_and_b32 v{VTMP+3}, 3, v0
    v_lshl_or_b32 v{VTMP+2}, v{VTMP+3}, 3, v{VTMP+2}
    s_and_b32 s{S_T2}, s{S_WAVE}, 1
    s_mul_i32 s{S_U0}, s{S_T2}, 36864
    s_lshr_b32 s{S_T3}, s{S_WAVE}, 2
    s_mul_i32 s{S_U1}, s{S_T3}, {288*64}
    s_add_u32 s{S_U0}, s{S_U0}, s{S_U1}
    s_add_u32 s{S_U0}, s{S_U0}, {L_WT}
    v_add3_u32 v{VTMP+1}, v{VTMP+1}, v{VTMP+2}, s{S_U0}
    s_mul_i32 s{S_U1}, s{S_T3}, 576
    v_mul_u32_u24 v{VTMP+2}, 1152, v{VJ1}
    v_add3_u32 v{VTMP+2}, v{VTMP+2}, v{VG16}, s{S_U1}
    s_lshl_b32 s{S_T2}, s{S_T2}, 1
    s_add_u32 s{S_T2}, s{S_T2}, s{S_T3}
    s_lshl_b32 s{S_T2}, s{S_T2}, 8
    s_lshl_b32 s{S_T1}, s{S_T1}, 6
    s_add_u32 s{S_T2}, s{S_T2}, s{S_T1}
    v_lshl_add_u32 v{VTMP+3}, v{VJ1}, 7, v{VG16}
    v_add_u32 v{VTMP+3}, s{S_T2}, v{VTMP+3}
    """)
    poll_ge(L_PROG, BIAS + P_R0 + 72, VTMP, VZ, sleep=1)
    for ks in range(9):
        a(f"ds_read_b64_tr_b16 {vr(VW+ks*4,2)}, v{VTMP+1} offset:{ks*2048}")
        a(f"ds_read_b64_tr_b16 {vr(VW+ks*4+2,2)}, v{VTMP+1} offset:{ks*2048+256}")
    stamp(6, VTMP + 4, VTMP + 5)
    poll_ge(L_HNF, 1, VTMP, VZ, sleep=0)
    for ks in range(9):
        a(f"ds_read_b128 {vr(VB+ks*4,4)}, v{VTMP+2} offset:{L_XN+ks*64}")
    for ks in range(9):
        a(f"s_waitcnt lgkmcnt({8-ks})")
        c = "0" if ks == 0 else vr(VD, 4)
        a(f"v_mfma_f32_16x16x32_bf16 {vr(VD,4)}, {vr(VW+ks*4,4)}, {vr(VB+ks*4,4)}, {c}")
    a(f"""
    s_mov_b64 exec, {sr(S_M8,2)}
    s_nop 7
    ds_write_b128 v{VTMP+3}, {vr(VD,4)} offset:{L_GU}
    s_mov_b64 exec, -1
    s_waitcnt lgkmcnt(0)
    """)
    a("L_F2:")
    a("s_barrier")
    f2_stage()
    stamp(7, VTMP, VTMP + 1)
    a("s_endpgm")

    a("L_COMPW:")
    w_pre()
    stamp(6, VTMP, VTMP + 1)
    a("L_W2:")
    a("s_barrier")
    w_post()
    stamp(7, VTMP, VTMP + 1)
    a(f"""
    s_cmp_ge_u32 s{S_R}, 36
    s_cbranch_scc1 L_END
    s_cmp_eq_u32 s{S_WAVE}, 8
    s_cbranch_scc1 L_R1
    """)
    gather_reduce(WS_YP, 64, 1, L_ACC1)
    a("L_R1:")
    a(f"""
    s_barrier
    s_cmp_eq_u32 s{S_WAVE}, 8
    s_cbranch_scc0 L_R2
    """)
    a(f"""
    v_lshlrev_b32 v{VX+1}, 2, v0
    ds_read_b32 v{VX+2}, v{VX+1} offset:{L_ACC1}
    s_lshl_b32 s{S_U0}, s{S_R}, 7
    s_add_u32 s{S_U0}, s{S_U0}, {WS_HB}
    v_lshlrev_b32 v{VX+3}, 4, v{VJ1}
    v_lshrrev_b32 v{VX+3}, v{VX+3}, s{S_TAG}
    v_and_b32 v{VX+3}, 0xffff, v{VX+3}
    s_waitcnt lgkmcnt(0)
    """)
    bf16r(VX + 2, VX + 2)
    a(f"v_add_f32 v{VX+2}, v{VX+2}, v{VX+8}")
    bf16r(VX + 9, VX + 2)
    a(f"""
    v_or_b32 v{VX+3}, v{VX+3}, v{VX+9}
    s_mov_b32 exec_hi, 0
    buffer_store_dword v{VX+3}, v{VX+1}, {sr(SRD_WS,4)}, s{S_U0} offen sc1
    s_mov_b64 exec, -1
    """)
    stamp(8, VTMP, VTMP + 1)
    a("L_R2:")
    gather_reduce(WS_ZP, 144, 2, L_ACC2)
    a(f"""
    s_barrier
    s_cmp_eq_u32 s{S_WAVE}, 8
    s_cbranch_scc0 L_END
    v_lshlrev_b32 v{VX+1}, 2, v0
    ds_read_b32 v{VX+2}, v{VX+1} offset:{L_ACC2}
    """)
    srd(SRD_D, KA_OUT, 2304)
    a(f"""
    s_lshl_b32 s{S_U0}, s{S_R}, 6
    v_lshlrev_b32 v{VX+1}, 1, v0
    s_waitcnt lgkmcnt(0)
    """)
    bf16r(VX + 2, VX + 2)
    a(f"""
    v_add_f32 v{VX+2}, v{VX+2}, v{VX+9}
    v_cvt_pk_bf16_f32 v{VX+2}, v{VX+2}, v{VX+2}
    s_mov_b32 exec_hi, 0
    buffer_store_short v{VX+2}, v{VX+1}, {sr(SRD_D,4)}, s{S_U0} offen
    s_mov_b64 exec, -1
    """)
    stamp(9, VTMP, VTMP + 1)
    a(f"""
    s_cmp_lg_u32 s{S_R}, 0
    s_cbranch_scc1 L_END
    s_add_u32 s{S_T0}, s{S_EP}, 1
    v_mov_b32 v{VX+2}, s{S_T0}
    s_mov_b64 exec, 1
    buffer_store_dword v{VX+2}, v{VZ}, {sr(SRD_WS,4)}, 0 offen sc1
    s_endpgm
    """)

    def layernorm(nv, vx, vs, vt, wr):
        a(f"v_add_f32 v{vs}, v{vx}, v{vx+1}")
        for k in range(2, nv):
            a(f"v_add_f32 v{vs}, v{vs}, v{vx+k}")
        half_reduce("add", vs, vt)
        a(f"v_mul_f32 v{vs}, {hex(f2u(1.0/576))}, v{vs}")

    a("L_COMM:")
    a("s_setprio 2")
    if cfg.HOPS:
        a(f"""
        s_getpc_b64 {sr(S_PC,2)}
        """)
        a("L_PCREF:")
        a(f"""
        s_sub_u32 s{S_PC}, s{S_PC}, L_PCREF-{NAME}_kernel
        s_subb_u32 s{S_PC+1}, s{S_PC+1}, 0
        v_lshlrev_b32 v{VTMP}, 7, v0
        v_add_u32 v{VTMP+1}, 8192, v{VTMP}
        v_min_u32 v{VTMP}, L_CODE_END-{NAME}_kernel-4, v{VTMP}
        v_min_u32 v{VTMP+1}, L_CODE_END-{NAME}_kernel-4, v{VTMP+1}
        global_load_dword v{VX+10}, v{VTMP}, {sr(S_PC,2)}
        global_load_dword v{VX+11}, v{VTMP+1}, {sr(S_PC,2)}
        """)
    a(f"""
    v_lshlrev_b32 v{VX}, 2, v0
    v_mov_b32 v{VX+1}, 0xff800000
    ds_write_b32 v{VX}, v{VZ}
    ds_write_b32 v{VX}, v{VZ} offset:256
    s_mov_b64 exec, 3
    ds_write_b32 v{VX}, v{VX+1} offset:{L_MX}
    s_mov_b64 exec, -1
    ; x address: (l>>5)*1152 + (l&31)*4
    v_lshrrev_b32 v{VX+2}, 5, v0
    v_mul_u32_u24 v{VX+2}, 1152, v{VX+2}
    v_and_b32 v{VX+3}, 31, v0
    v_lshl_add_u32 v{VX+2}, v{VX+3}, 2, v{VX+2}
    s_waitcnt lgkmcnt(0)
    """)
    srd(SRD_A, KA_X, 2304)
    for k in range(9):
        a(f"buffer_load_dword v{VB+k}, v{VX+2}, {sr(SRD_A,4)}, 0 offen offset:{128*k}")
    srd(SRD_WS, KA_WS, WS_SIZE)
    a(f"""
    s_load_dword s{S_EP}, {sr(KA_WS,2)}, {WS_EPOCH} glc
    s_barrier
    """)
    role_idx()
    a(f"""
    s_lshl_b32 s{S_U0}, s{S_R}, 6
    s_min_u32 s{S_U0}, s{S_U0}, 0x10000
    v_lshlrev_b32 v{VX+4}, 1, v0
    buffer_load_ushort v{VX+8}, v{VX+4}, {sr(SRD_A,4)}, s{S_U0} offen
    """)
    lane_setup()
    a("s_waitcnt vmcnt(1)")
    for k in range(9):
        a(f"""
        v_lshlrev_b32 v{VW+2*k}, 16, v{VB+k}
        v_and_b32 v{VW+2*k+1}, 0xffff0000, v{VB+k}
        """)

    def ln_core(nv, vx, vs, vq, vt, masked_tail):
        a(f"v_add_f32 v{vs}, v{vx}, v{vx+1}")
        for k in range(2, nv):
            a(f"v_add_f32 v{vs}, v{vs}, v{vx+k}")
        half_reduce("add", vs, vt)
        a(f"v_mul_f32 v{vs}, {hex(f2u(1.0/576))}, v{vs}")
        nfull = nv - masked_tail
        a(f"""
        v_sub_f32 v{vt}, v{vx}, v{vs}
        v_mul_f32 v{vq}, v{vt}, v{vt}
        """)
        for k in range(1, nfull):
            a(f"""
            v_sub_f32 v{vt}, v{vx+k}, v{vs}
            v_fmac_f32 v{vq}, v{vt}, v{vt}
            """)
        if masked_tail:
            a(f"""
            s_mov_b32 exec_lo, 0xffff
            s_mov_b32 exec_hi, 0xffff
            """)
            for k in range(nfull, nv):
                a(f"""
                v_sub_f32 v{vt}, v{vx+k}, v{vs}
                v_fmac_f32 v{vq}, v{vt}, v{vt}
                """)
            a("s_mov_b64 exec, -1")
        half_reduce("add", vq, vt)
        a(f"v_mul_f32 v{vq}, {hex(f2u(1.0/576))}, v{vq}")
        bf16r(vs, vs)
        bf16r(vq, vq)
        a(f"v_add_f32 v{vq}, {hex(f2u(1e-5))}, v{vq}")
        bf16r(vq, vq)
        a(f"""
        v_sqrt_f32 v{vq}, v{vq}
        s_nop 0
        """)
        bf16r(vq, vq)
        a(f"""
        v_rcp_f32 v{vq}, v{vq}
        """)
        for k in range(0, nv, 2):
            a(f"""
            v_sub_f32 v{vx+k}, v{vx+k}, v{vs}
            v_sub_f32 v{vx+k+1}, v{vx+k+1}, v{vs}
            v_cvt_pk_bf16_f32 v{vt}, v{vx+k}, v{vx+k+1}
            v_lshlrev_b32 v{vx+k}, 16, v{vt}
            v_and_b32 v{vx+k+1}, 0xffff0000, v{vt}
            v_mul_f32 v{vx+k}, v{vx+k}, v{vq}
            v_mul_f32 v{vx+k+1}, v{vx+k+1}, v{vq}
            v_cvt_pk_bf16_f32 v{VB+k//2}, v{vx+k}, v{vx+k+1}
            """)

    ln_core(18, VW, VTMP, VTMP + 1, VTMP + 2, 0)
    for k in range(9):
        a(f"ds_write_b32 v{VX+2}, v{VB+k} offset:{L_XN+128*k}")
    a(f"""
    v_mov_b32 v{VX+1}, 1
    ds_write_b32 v{VZ}, v{VX+1} offset:{L_XNF}
    s_waitcnt lgkmcnt(0)
    """)
    tags_setup()
    stamp(0, VTMP, VTMP + 1)
    a(f"""
    s_waitcnt vmcnt(0)
    v_lshlrev_b32 v{VX+8}, 16, v{VX+8}
    s_lshl_b32 s{S_U0}, s{S_B}, 4
    s_add_u32 s{S_U0}, s{S_U0}, s{S_KVH}
    s_lshl_b32 s{S_U0}, s{S_U0}, 12
    s_add_u32 s{S_U0}, s{S_U0}, {WS_QP}
    v_lshlrev_b32 v{VX+4}, 4, v0
    s_mov_b32 s{S_CNT}, {cfg.TMO_G}
    """)
    a("L_QG:")
    for k in range(4):
        a(f"buffer_load_dwordx4 {vr(VB+4*k,4)}, v{VX+4}, {sr(SRD_WS,4)}, s{S_U0} offen offset:{1024*k} sc1")
    for k in range(4):
        a(f"s_waitcnt vmcnt({3-k})")
        chk4(VX + 5, VB + 4 * k, k == 0)
    chk_end(VX + 5, "L_QG", "L_QGD")
    for d in range(4):
        a(f"""
        v_add_f32 v{VB+d}, v{VB+d}, v{VB+4+d}
        v_add_f32 v{VB+8+d}, v{VB+8+d}, v{VB+12+d}
        v_add_f32 v{VB+d}, v{VB+d}, v{VB+8+d}
        """)
    a(f"""
    v_cvt_pk_bf16_f32 v{VB}, v{VB}, v{VB+1}
    v_cvt_pk_bf16_f32 v{VB+1}, v{VB+2}, v{VB+3}
    v_lshlrev_b32 v{VX+5}, 3, v0
    ds_write_b64 v{VX+5}, {vr(VB,2)} offset:{L_Q}
    ds_write_b32 v{VZ}, v{VX+1} offset:{L_QF}
    """)
    stamp(1, VTMP, VTMP + 1)
    poll_ge(L_SUM + 8, 8, VTMP, VZ, sleep=1)
    a(f"""
    v_lshlrev_b32 v{VX+5}, 2, v{VJ1}
    ds_read_b32 v{VB}, v{VX+5} offset:{L_MX}
    ds_read_b32 v{VB+1}, v{VX+5} offset:{L_SUM}
    v_lshlrev_b32 v{VX+5}, 8, v{VJ1}
    s_lshl_b32 s{S_U0}, s{S_KVH}, 9
    s_and_b32 s{S_T1}, s{S_I}, 15
    s_lshl_b32 s{S_T1}, s{S_T1}, 4
    s_add_u32 s{S_U0}, s{S_U0}, s{S_T1}
    s_add_u32 s{S_U0}, s{S_U0}, {WS_ST}
    s_waitcnt lgkmcnt(0)
    v_mov_b32 v{VB+2}, v{VB}
    v_mov_b32 v{VB+3}, v{VB+1}
    """)
    tag4(VB, VFF)
    a(f"""
    s_mov_b64 exec, 3
    buffer_store_dwordx4 {vr(VB,4)}, v{VX+5}, {sr(SRD_WS,4)}, s{S_U0} offen sc1
    s_mov_b64 exec, -1
    """)
    stamp(2, VTMP, VTMP + 1)
    a(f"""
    s_cmp_ge_u32 s{S_I}, 26
    s_cbranch_scc1 L_END
    s_cmp_ge_u32 s{S_I}, 18
    s_cbranch_scc1 L_COMMW
    """)
    a(f"""
    v_lshrrev_b32 v{VX+4}, 5, v0
    v_mul_u32_u24 v{VX+5}, 2304, v{VX+4}
    v_and_b32 v{VX+6}, 31, v0
    v_lshl_add_u32 v{VX+5}, v{VX+6}, 4, v{VX+5}
    v_mul_u32_u24 v{VX+4}, 1152, v{VX+4}
    v_lshl_add_u32 v{VX+4}, v{VX+6}, 3, v{VX+4}
    s_mov_b32 s{S_U0}, {WS_HB}
    s_mov_b32 s{S_CNT}, {cfg.TMO_G}
    v_mov_b32 v{VW+16}, s{S_TAG}
    v_mov_b32 v{VW+17}, s{S_TAG+2}
    v_and_b32 v{VW+16}, 0xffff, v{VW+16}
    v_mov_b32 v{VW+18}, v{VW+16}
    v_mov_b32 v{VW+19}, v{VW+17}
    """)
    a("L_HG:")
    for k in range(4):
        a(f"buffer_load_dwordx4 {vr(VW+4*k,4)}, v{VX+5}, {sr(SRD_WS,4)}, s{S_U0} offen offset:{512*k} sc1")
    a(f"""
    s_mov_b32 exec_lo, 0xffff
    s_mov_b32 exec_hi, 0xffff
    buffer_load_dwordx4 {vr(VW+16,4)}, v{VX+5}, {sr(SRD_WS,4)}, s{S_U0} offen offset:2048 sc1
    s_mov_b64 exec, -1
    """)
    for k in range(5):
        a(f"s_waitcnt vmcnt({4-k})")
        for d in range(4):
            st = S_TAG if d % 2 == 0 else S_TAG + 2
            if k == 0 and d == 0:
                a(f"v_xor_b32 v{VX+6}, s{st}, v{VW}")
            else:
                a(f"v_bitop3_b32 v{VX+6}, v{VX+6}, v{VW+4*k+d}, s{st} bitop3:0xf6")
    chk_end(VX + 6, "L_HG", "L_HGD", mask=0xffff)
    stamp(3, VTMP, VTMP + 1)
    for k in range(20):
        a(f"v_and_b32 v{VW+k}, 0xffff0000, v{VW+k}")
    ln_core(20, VW, VTMP, VTMP + 1, VTMP + 2, 4)
    for k in range(4):
        a(f"ds_write_b64 v{VX+4}, {vr(VB+2*k,2)} offset:{L_XN+256*k}")
    a(f"""
    s_mov_b32 exec_lo, 0xffff
    s_mov_b32 exec_hi, 0xffff
    ds_write_b64 v{VX+4}, {vr(VB+8,2)} offset:{L_XN+1024}
    s_mov_b64 exec, -1
    ds_write_b32 v{VZ}, v{VX+1} offset:{L_HNF}
    s_waitcnt lgkmcnt(0)
    """)
    stamp(4, VTMP, VTMP + 1)
    a("s_branch L_F2")

    a("L_COMMW:")
    VS = VD + 16
    a(f"""
    s_lshr_b32 s{S_T1}, s{S_RI}, 1
    s_lshl_b32 s{S_U0}, s{S_T1}, 8
    s_add_u32 s{S_U0}, s{S_U0}, {WS_ST}
    v_and_b32 v{VX+4}, 7, v0
    v_lshlrev_b32 v{VX+4}, 4, v{VX+4}
    s_mov_b32 s{S_CNT}, {cfg.TMO_G}
    """)
    a("L_SG:")
    a(f"""
    buffer_load_dwordx4 {vr(VB,4)}, v{VX+4}, {sr(SRD_WS,4)}, s{S_U0} offen sc1
    buffer_load_dwordx4 {vr(VB+4,4)}, v{VX+4}, {sr(SRD_WS,4)}, s{S_U0} offen offset:128 sc1
    """)
    for k in range(4):
        a(f"buffer_load_dwordx4 {vr(VB+8+4*k,4)}, v{VG16}, {sr(SRD_WS,4)}, s{S_U0} offen offset:{64*k} sc1")
    for k in range(6):
        a(f"s_waitcnt vmcnt({5-k})")
        chk4(VX + 5, VB + 4 * k, k == 0)
    chk_end(VX + 5, "L_SG", "L_SGD")
    a(f"s_mov_b32 s{S_T2}, 0x3fb8aa3b")
    for b in range(2):
        m, l = VB + 4 * b, VB + 4 * b + 1
        M, Ls = VS + 2 * b, VS + 2 * b + 1
        a(f"""
        v_and_b32 v{m}, 0xffffff00, v{m}
        s_nop 1
        v_max_f32_dpp v{M}, v{m}, v{m} quad_perm:[1,0,3,2] row_mask:0xf bank_mask:0xf
        s_nop 1
        v_max_f32_dpp v{M}, v{M}, v{M} quad_perm:[2,3,0,1] row_mask:0xf bank_mask:0xf
        s_nop 1
        v_max_f32_dpp v{M}, v{M}, v{M} row_half_mirror row_mask:0xf bank_mask:0xf
        v_sub_f32 v{m}, v{m}, v{M}
        v_mul_f32 v{m}, s{S_T2}, v{m}
        v_exp_f32 v{m}, v{m}
        s_nop 0
        v_mul_f32 v{Ls}, v{m}, v{l}
        s_nop 1
        v_add_f32_dpp v{Ls}, v{Ls}, v{Ls} quad_perm:[1,0,3,2] row_mask:0xf bank_mask:0xf
        s_nop 1
        v_add_f32_dpp v{Ls}, v{Ls}, v{Ls} quad_perm:[2,3,0,1] row_mask:0xf bank_mask:0xf
        s_nop 1
        v_add_f32_dpp v{Ls}, v{Ls}, v{Ls} row_half_mirror row_mask:0xf bank_mask:0xf
        v_rcp_f32 v{Ls}, v{Ls}
        """)
    for k in range(4):
        b = k >> 1
        m = VB + 8 + 4 * k
        a(f"""
        v_and_b32 v{m}, 0xffffff00, v{m}
        v_sub_f32 v{m}, v{m}, v{VS+2*b}
        v_mul_f32 v{m}, s{S_T2}, v{m}
        v_exp_f32 v{m}, v{m}
        s_nop 0
        v_mul_f32 v{VS+4+k}, v{m}, v{VS+2*b+1}
        """)
    stamp(3, VTMP, VTMP + 1)
    w_pre()
    a(f"""
    s_lshl_b32 s{S_U2}, s{S_RI}, 12
    s_add_u32 s{S_U2}, s{S_U2}, {WS_OP}
    v_lshlrev_b32 v{VX+4}, 4, v0
    v_lshrrev_b32 v{VX+6}, 5, v0
    v_lshlrev_b32 v{VX+6}, 7, v{VX+6}
    v_and_b32 v{VX+5}, 15, v0
    v_lshl_add_u32 v{VX+6}, v{VX+5}, 3, v{VX+6}
    v_bfe_u32 v{VX+5}, v0, 4, 1
    v_lshl_add_u32 v{VX+6}, v{VX+5}, 2, v{VX+6}
    s_mov_b32 s{S_CNT}, {cfg.TMO_G}
    """)
    stamp(4, VTMP, VTMP + 1)
    a("L_OG:")
    for k in range(4):
        a(f"buffer_load_dwordx4 {vr(VB+4*k,4)}, v{VX+4}, {sr(SRD_WS,4)}, s{S_U2} offen offset:{1024*k} sc1")
    for k in range(4):
        a(f"s_waitcnt vmcnt({3-k})")
        chk4(VX + 5, VB + 4 * k, k == 0)
    chk_end(VX + 5, "L_OG", "L_OGD")
    for d in range(4):
        a(f"""
        v_mul_f32 v{VB+d}, v{VB+d}, v{VS+4}
        v_mul_f32 v{VB+8+d}, v{VB+8+d}, v{VS+6}
        v_fmac_f32 v{VB+d}, v{VB+4+d}, v{VS+5}
        v_fmac_f32 v{VB+8+d}, v{VB+12+d}, v{VS+7}
        """)
    a("s_nop 1")
    for d in range(4):
        a(f"v_permlane32_swap_b32 v{VB+d}, v{VB+8+d}")
    a("s_nop 1")
    for d in range(4):
        a(f"v_add_f32 v{VB+d}, v{VB+d}, v{VB+8+d}")
    a(f"""
    s_nop 1
    v_permlane16_swap_b32 v{VB}, v{VB+2}
    v_permlane16_swap_b32 v{VB+1}, v{VB+3}
    s_nop 1
    v_add_f32 v{VB}, v{VB}, v{VB+2}
    v_add_f32 v{VB+1}, v{VB+1}, v{VB+3}
    v_cvt_pk_bf16_f32 v{VB}, v{VB}, v{VB+1}
    ds_write_b32 v{VX+6}, v{VB} offset:{L_O}
    s_waitcnt lgkmcnt(0)
    """)
    stamp(5, VTMP, VTMP + 1)
    a("s_branch L_W2")
    a("L_END:")
    a("s_endpgm")
    return a


def f2u(x):
    import struct
    return struct.unpack("<I", struct.pack("<f", x))[0]


HEADER_SRC = os.path.join(HERE, "..", "cdna_kernels", NAME + ".s.ref")


def render(a, cfg, hops=None):
    head = []
    for line in open(HEADER_SRC):
        if line.startswith("; @launch"):
            head.append(f"; @launch grid=(256,1,1) block=(640,1,1) lds={L_END}\n")
            break
        head.append(line)
    out = ["".join(head)]
    out.append(f""".amdgcn_target "amdgcn-amd-amdhsa--gfx950"
.text
.globl {NAME}_kernel
.p2align 8
.type {NAME}_kernel,@function
{NAME}_kernel:
""")
    n = 0
    for kind, t in a.lines:
        if kind == "i":
            if hops and n in hops:
                for h in hops[n]:
                    out.append(h + "\n")
            out.append("    " + t + "\n")
            n += 1
        elif kind in ("l", "c"):
            out.append(("" if kind == "l" else "    ") + t + "\n")
    out.append("L_CODE_END:\n")
    if cfg.HOPS and not hops:
        for r in range(8):
            out.append(f"HOPR_{r}:\n")
        out.append("    s_endpgm\n")
    out.append(f""".section .rodata,"a"
.p2align 6
.amdhsa_kernel {NAME}_kernel
  .amdhsa_next_free_vgpr 168
  .amdhsa_next_free_sgpr 80
  .amdhsa_accum_offset 168
  .amdhsa_group_segment_fixed_size 0
  .amdhsa_kernarg_size 96
  .amdhsa_user_sgpr_count 2
  .amdhsa_user_sgpr_kernarg_segment_ptr 1
  .amdhsa_system_sgpr_workgroup_id_x 1
.end_amdhsa_kernel
""")
    return "".join(out)


def sizes_of(text):
    tmp = os.path.join(HERE, "_tmp.s")
    open(tmp, "w").write(text)
    subprocess.check_call(["clang", "-x", "assembler", "-target", "amdgcn-amd-amdhsa",
                           "-mcpu=gfx950", "-c", tmp, "-o", tmp + ".o"])
    dis = subprocess.check_output(["llvm-objdump", "-d", "--mcpu=gfx950", tmp + ".o"]).decode()
    sz = []
    for line in dis.splitlines():
        m = re.search(r"// ([0-9A-F]{12}): ((?:[0-9A-F]{8} ?)+)", line)
        if m:
            sz.append(4 * len(m.group(2).split()))
    return sz


def generate(cfg):
    a = build(cfg)
    if not cfg.HOPS:
        return render(a, cfg)
    sz = sizes_of(render(a, cfg))
    ins = [t for k, t in a.lines if k == "i"]
    idx = 0
    ladder = set()
    inl = False
    for kind, t in a.lines:
        if kind == "i":
            if t == "s_mov_b64 exec, 0":
                inl = True
            if inl:
                ladder.add(idx)
            idx += 1
        elif kind == "l" and t == "L_RESUME:":
            inl = False
            ladder.add(idx)
    start = 40
    pos = []
    acc = 60
    for n in range(start, len(ins)):
        if acc + sz[n] > 60 and n not in ladder and not ins[n - 1].startswith("s_getpc"):
            pos.append(n)
            acc = 0
        acc += sz[n]
    per = (len(pos) + 7) // 8
    hops = {}
    for k, n in enumerate(pos):
        labs = [f"HOP_{k}:"]
        if k % per == 0:
            labs.append(f"HOPR_{k // per}:")
        last = (k % per == per - 1) or k == len(pos) - 1
        tgt = "L_RESUME" if last else f"HOP_{k+1}"
        hops[n] = labs + [f"    s_cbranch_execz {tgt}"]
    assert (len(pos) - 1) // per == 7, (len(pos), per)
    return render(a, cfg, hops)


if __name__ == "__main__":
    cfg = Cfg()
    out = os.path.join(HERE, "..", "cdna_kernels", NAME + ".s")
    for arg in sys.argv[1:]:
        if arg.startswith("out="):
            out = arg[4:]
        else:
            k, v = arg.split("=")
            setattr(cfg, k, int(v, 0))
    text = generate(cfg)
    open(out, "w").write(text)
    print("wrote", out, len(text), "bytes")
```

```python
import os, re, subprocess, sys, struct

NAME = "sequential_preLN__sliding_block_cached__glu_gated_swiglu__decode"
HERE = os.path.dirname(os.path.abspath(__file__))


class Cfg:
    D = 24
    DF = 12
    DF2 = 24
    DL = 44
    PFPOS = 16
    QTRIG = 36
    HTRIG = 36
    STRIG = 48
    NTKV = 1
    LNT = 1
    HSLEEP = 0
    MG = 0
    XS = 0
    HPIPE = 0
    RPIPE = 0
    GATE2 = 0
    MGO = 0
    OFIRST = 0
    DW = 36
    RED = 0
    PIPE = 0
    ZSLEEP = 0
    RSLEEP = 0
    YTOUCH = 1
    HYB = 0
    QUIET = 0
    DTRIG = 72
    C3 = 1
    HDELAY = 0
    MOVEC = 1
    GMASK = 63
    SCHED = 'WWWWWKKKKK'
    D0 = 24
    VD2 = 0
    VPOS = 6
    D3 = 24
    SHINT = 0
    DIAG = 0
    OTRIG = 0
    W2MID = 0
    EARLYH = 0
    OSLEEP = 0
    GATE = 0
    NTW = 0
    STAMP = 0
    HOPS = 1
    TMO_L = 0x80000
    TMO_G = 0x8000


def f2u(x):
    return struct.unpack("<I", struct.pack("<f", x))[0]


WS_EPOCH = 0
WS_QP = 0x1000
WS_ST = WS_QP + 0x20000
WS_OP = WS_ST + 0x2000
WS_HB = WS_OP + 0x40000
WS_LOC = 0x80000
WS_YP = 0x100000
WS_ZP = WS_YP + 0x10000
WS_DBG = 0x200000
WS_SIZE = 0x400000
assert WS_HB + 8 * 8192 <= WS_LOC + 0x1000 and WS_ZP + 36 * 144 * 128 <= WS_DBG

L_PROG = 0
L_XNF = 4
L_QF = 8
L_KD = 12
L_MX = 16
L_SUM = 32
L_WF = 48
L_M2 = 52
L_LNS = 64
L_WGT = 128
L_ZERO = 384
L_XN = 512
L_ONES = 2816
L_Q = 4096
L_P = 4608
L_GU = 5760
L_HH = 7296
L_O = 5760
L_ACCR = 8448
L_MXT = 9984
L_SMT = 10048
L_OS = 10240
L_V = 11264
L_WT = L_V + 65536
L_K = L_WT
L_WQ = L_WT + 65536
L_END = L_WQ + 18432
L_ACCW = L_WQ
assert L_END <= 163840

BIAS = 64
N_WQ, N_K, N_V = 18, 64, 64
P_WQ = N_WQ
P_K0 = N_WQ
P_V0 = N_WQ + N_K
P_R0 = N_WQ + N_K + N_V
NPF, NPFW = 20, 16
NW = 9


class Asm:
    def __init__(self):
        self.lines = []
        self.uid = 0

    def __call__(self, text):
        for t in text.strip().split("\n"):
            t = t.strip()
            if not t:
                continue
            if t.startswith(";"):
                self.lines.append(("c", t))
            elif t.endswith(":"):
                self.lines.append(("l", t))
            else:
                self.lines.append(("i", t))

    def lab(self, base="L"):
        self.uid += 1
        return f"{base}_{self.uid}"


def vr(a, n):
    return f"v[{a}:{a + n - 1}]"


def sr(a, n):
    return f"s[{a}:{a + n - 1}]"


S_WG, S_WAVE, S_X, S_I, S_TAG, S_EP = 2, 3, 4, 5, 6, 10
S_T0, S_T1, S_T2, S_T3, S_CNT = 11, 12, 13, 14, 15
KA_X, KA_K, KA_V, KA_WQ, KA_WO, KA_BX, KA_W1, KA_W3, KA_W2, KA_OUT, KA_DBG, KA_WS = [16 + 2 * k for k in range(12)]
SRD_A, SRD_B, SRD_C, SRD_WS, SRD_D = 40, 44, 48, 52, 56
S_KVH, S_B, S_S, S_R = 60, 61, 62, 63
S_U0, S_U1, S_U2, S_U3 = 64, 65, 66, 67
S_M8 = 68
S_PC = 70
S_CB, S_V1, S_RI, S_V0 = 72, 73, 74, 75
S_TAGF = 76
S_A0, S_A1, S_C1, S_C2 = 26, 27, 36, 37

VZ, VFF, VG16, VJ1, VTR, VONE = 2, 3, 4, 5, 6, 7
VTMP = 8
VW = 16
VB = 80
VD = 116
VA = 132
VR = 140
DPPM = "row_mask:0xf bank_mask:0xf"


def build(cfg):
    a = Asm()
    D = cfg.D
    NPF = 20 + 4 * cfg.RED

    def srd(dst, ka, size):
        a(f"""
        s_mov_b32 s{dst}, s{ka}
        s_and_b32 s{dst+1}, s{ka+1}, 0xffff
        s_mov_b32 s{dst+2}, {size}
        s_mov_b32 s{dst+3}, 0x20000
        """)

    def stamp(idx):
        if cfg.STAMP:
            a(f"s_memtime {sr(80+2*idx,2)}")

    def endpgm():
        a("s_branch L_FLUSH" if cfg.STAMP else "s_endpgm")

    def poll_ge(off, thr, vt, sleep=1):
        L = a.lab("PL")
        O = a.lab("PO")
        a(f"s_mov_b32 s{S_CNT}, {cfg.TMO_L}")
        a(f"{L}:")
        a(f"""
        ds_read_b32 v{vt}, v{VZ} offset:{off}
        s_sub_u32 s{S_CNT}, s{S_CNT}, 1
        s_cbranch_scc1 {O}
        s_waitcnt lgkmcnt(0)
        v_readfirstlane_b32 s{S_T0}, v{vt}
        """)
        if sleep:
            a(f"""
            s_cmp_ge_u32 s{S_T0}, {thr}
            s_cbranch_scc1 {O}
            s_sleep {sleep}
            s_branch {L}
            """)
        else:
            a(f"""
            s_cmp_lt_u32 s{S_T0}, {thr}
            s_cbranch_scc1 {L}
            """)
        a(f"{O}:")

    def tags_setup():
        a(f"""
        s_add_u32 s{S_TAGF}, s{S_EP}, 1
        s_mul_i32 s{S_TAGF}, s{S_TAGF}, 0x9E3779B1
        s_and_b32 s{S_TAG}, s{S_TAGF}, 0xff
        s_bfe_u32 s{S_TAG+1}, s{S_TAGF}, 0x80008
        s_bfe_u32 s{S_TAG+2}, s{S_TAGF}, 0x80010
        s_lshr_b32 s{S_TAG+3}, s{S_TAGF}, 24
        """)

    def tag4(d, rnd=True):
        if rnd:
            for k in range(4):
                a(f"v_add_u32 v{d+k}, 0x80, v{d+k}")
        for k in range(4):
            a(f"v_bfi_b32 v{d+k}, v{VFF}, s{S_TAG+k}, v{d+k}")

    def chk4(acc, d, first):
        for k in range(4):
            a(f"v_xor_b32 v{d+k}, s{S_TAG+k}, v{d+k}")
        if first:
            a(f"v_or3_b32 v{acc}, v{d}, v{d+1}, v{d+2}")
            a(f"v_or_b32 v{acc}, v{acc}, v{d+3}")
        else:
            a(f"v_or3_b32 v{acc}, v{acc}, v{d}, v{d+1}")
            a(f"v_or3_b32 v{acc}, v{acc}, v{d+2}, v{d+3}")

    def chk_end(acc, retry, done, cnt=S_CNT, toggle=None, tmask=15):
        a(f"""
        v_and_b32 v{acc}, v{VFF}, v{acc}
        v_cmp_ne_u32 vcc, 0, v{acc}
        s_cbranch_vccz {done}
        s_sub_u32 s{cnt}, s{cnt}, 1
        s_cbranch_scc1 {done}
        """)
        if toggle is not None:
            cur, base = toggle
            a(f"""
            s_and_b32 s{S_T0}, s{cnt}, {tmask}
            s_cmp_eq_u32 s{S_T0}, 0
            s_cselect_b32 s{cur}, 0, {WS_LOC}
            s_add_u32 s{cur}, s{cur}, s{base}
            """)
        a(f"s_branch {retry}")
        a(f"{done}:")

    S_MK = S_T3

    def mgather(n, dst, vaddr, soff, on_valid, toggle=None, pre_issued=False, extra=None, on_retry=None, sleep=0, masked=None):
        LOOP = a.lab("MG")
        CHK = a.lab("MC")
        DONE = a.lab("MD")
        if not (cfg.MG if masked is None else masked):
            a(f"s_mov_b32 s{S_CNT}, {cfg.TMO_G}")
            if pre_issued:
                a(f"s_branch {CHK}")
            a(f"{LOOP}:")
            for k in range(n):
                off = f" offset:{1024*k}" if k else ""
                a(f"buffer_load_dwordx4 {vr(dst+4*k,4)}, v{vaddr}, {sr(SRD_WS,4)}, s{soff} offen{off} sc1")
            a(f"{CHK}:")
            for k in range(n):
                a(f"s_waitcnt vmcnt({n-1-k})")
                chk4(VTMP + 1, dst + 4 * k, k == 0)
                on_valid(k, True)
            a(f"""
            v_and_b32 v{VTMP+1}, v{VFF}, v{VTMP+1}
            v_cmp_ne_u32 vcc, 0, v{VTMP+1}
            s_cbranch_vccz {DONE}
            s_sub_u32 s{S_CNT}, s{S_CNT}, 1
            s_cbranch_scc1 {DONE}
            """)
            if toggle is not None:
                cur, base = toggle
                a(f"""
                s_and_b32 s{S_T0}, s{S_CNT}, {cfg.GMASK}
                s_cmp_eq_u32 s{S_T0}, 0
                s_cselect_b32 s{cur}, 0, {WS_LOC}
                s_add_u32 s{cur}, s{cur}, s{base}
                """)
            if on_retry is not None:
                on_retry()
            if sleep:
                a(f"s_sleep {sleep}")
            a(f"s_branch {LOOP}")
            a(f"{DONE}:")
            return
        a(f"""
        s_mov_b32 s{S_MK}, {(1 << n) - 1}
        s_mov_b32 s{S_CNT}, {cfg.TMO_G}
        """)
        if pre_issued:
            a(f"s_waitcnt vmcnt({extra})")
            a(f"s_branch {CHK}")
        a(f"{LOOP}:")
        if cfg.STAMP == 4 and toggle is not None:
            stamp(0)
        for k in range(n):
            sk = a.lab("MS")
            off = f" offset:{1024*k}" if k else ""
            a(f"""
            s_bitcmp1_b32 s{S_MK}, {k}
            s_cbranch_scc0 {sk}
            buffer_load_dwordx4 {vr(dst+4*k,4)}, v{vaddr}, {sr(SRD_WS,4)}, s{soff} offen{off} sc1
            """)
            a(f"{sk}:")
        a("s_waitcnt vmcnt(0)")
        if cfg.STAMP == 4 and toggle is not None:
            sk = a.lab("MZ")
            a(f"""
            s_cmp_lg_u32 s{S_CNT}, {cfg.TMO_G}
            s_cbranch_scc1 {sk}
            """)
            stamp(1)
            a(f"{sk}:")
        a(f"{CHK}:")
        for k in range(n):
            nx = a.lab("MN")
            a(f"""
            s_bitcmp1_b32 s{S_MK}, {k}
            s_cbranch_scc0 {nx}
            """)
            chk4(VTMP + 1, dst + 4 * k, True)
            a(f"""
            v_and_b32 v{VTMP+1}, v{VFF}, v{VTMP+1}
            v_cmp_ne_u32 vcc, 0, v{VTMP+1}
            s_cbranch_vccnz {nx}
            s_bitset0_b32 s{S_MK}, {k}
            """)
            on_valid(k, False)
            a(f"{nx}:")
        a(f"""
        s_cmp_eq_u32 s{S_MK}, 0
        s_cbranch_scc1 {DONE}
        s_sub_u32 s{S_CNT}, s{S_CNT}, 1
        s_cbranch_scc1 {DONE}
        """)
        if toggle is not None:
            cur, base = toggle
            a(f"""
            s_and_b32 s{S_T0}, s{S_CNT}, {cfg.GMASK}
            s_cmp_eq_u32 s{S_T0}, 0
            s_cselect_b32 s{cur}, 0, {WS_LOC}
            s_add_u32 s{cur}, s{cur}, s{base}
            """)
        if on_retry is not None:
            on_retry()
        if sleep:
            a(f"s_sleep {sleep}")
        a(f"s_branch {LOOP}")
        a(f"{DONE}:")

    def pgather(n, bases, vaddr, soff, on_ok):
        LOOP = a.lab("PG")
        DONE = a.lab("PD")
        oks = [a.lab("PK") for _ in bases]
        ns = len(bases)

        def issue(b):
            for k in range(n):
                off = f" offset:{1024*k}" if k else ""
                a(f"buffer_load_dwordx4 {vr(b+4*k,4)}, v{vaddr}, {sr(SRD_WS,4)}, s{soff} offen{off} sc1")

        a(f"s_mov_b32 s{S_CNT}, {cfg.TMO_G}")
        for j, b in enumerate(bases):
            issue(b)
            if j < ns - 1:
                a("s_sleep 1")
        a(f"{LOOP}:")
        for j, b in enumerate(bases):
            a(f"s_waitcnt vmcnt({n*(ns-1)})")
            for k in range(n):
                chk4(VTMP + 1, b + 4 * k, k == 0)
            a(f"""
            v_and_b32 v{VTMP+1}, v{VFF}, v{VTMP+1}
            v_cmp_ne_u32 vcc, 0, v{VTMP+1}
            s_cbranch_vccz {oks[j]}
            """)
            issue(b)
        a(f"""
        s_sub_u32 s{S_CNT}, s{S_CNT}, 1
        s_cbranch_scc0 {LOOP}
        s_waitcnt vmcnt(0)
        """)
        for j, b in enumerate(bases):
            a(f"{oks[j]}:")
            on_ok(b)
            if j < ns - 1:
                a(f"s_branch {DONE}")
        a("s_nop 0")
        a(f"{DONE}:")
        a("s_nop 0")

    def pub(data, vaddr, soff):
        a(f"""
        s_add_u32 s{S_T0}, s{soff}, {WS_LOC}
        buffer_store_dwordx4 {vr(data,4)}, v{vaddr}, {sr(SRD_WS,4)}, s{S_T0} offen
        buffer_store_dwordx4 {vr(data,4)}, v{vaddr}, {sr(SRD_WS,4)}, s{soff} offen sc1
        """)

    def half_reduce(v, t):
        a(f"""
        s_nop 1
        v_add_f32_dpp v{v}, v{v}, v{v} quad_perm:[1,0,3,2] {DPPM}
        s_nop 1
        v_add_f32_dpp v{v}, v{v}, v{v} quad_perm:[2,3,0,1] {DPPM}
        s_nop 1
        v_add_f32_dpp v{v}, v{v}, v{v} row_half_mirror {DPPM}
        s_nop 1
        v_add_f32_dpp v{v}, v{v}, v{v} row_mirror {DPPM}
        v_mov_b32 v{t}, v{v}
        s_nop 1
        v_permlane16_swap_b32 v{v}, v{t}
        v_add_f32 v{v}, v{v}, v{t}
        """)

    def bf16r(dst, src):
        a(f"""
        v_cvt_pk_bf16_f32 v{dst}, v{src}, v{src}
        v_lshlrev_b32 v{dst}, 16, v{dst}
        """)

    def ln_tail(vs, vq, vt):
        a(f"""
        v_cvt_pk_bf16_f32 v{vt}, v{vs}, v{vq}
        v_and_b32 v{vq}, 0xffff0000, v{vt}
        v_lshlrev_b32 v{vs}, 16, v{vt}
        v_add_f32 v{vq}, {hex(f2u(1e-5))}, v{vq}
        v_xor_b32 v{vs}, 0x80000000, v{vs}
        """)
        bf16r(vq, vq)
        a(f"""
        v_sqrt_f32 v{vq}, v{vq}
        s_nop 0
        """)
        bf16r(vq, vq)
        a(f"v_rcp_f32 v{vq}, v{vq}")

    def lane_setup():
        a(f"""
        v_mov_b32 v{VFF}, 0xff
        v_mov_b32 v{VONE}, 1
        v_mov_b32 v{VR}, 0
        v_lshlrev_b32 v{VR+9}, 4, v0
        v_lshrrev_b32 v{VTMP}, 4, v0
        v_lshlrev_b32 v{VG16}, 4, v{VTMP}
        v_and_b32 v{VJ1}, 1, v0
        v_bfe_u32 v{VTMP+1}, v0, 2, 2
        v_lshl_add_u32 v{VTMP+2}, v{VTMP}, 3, v{VTMP+1}
        v_lshlrev_b32 v{VTMP+2}, 7, v{VTMP+2}
        v_bfe_u32 v{VTMP+3}, v0, 3, 1
        v_bfe_u32 v{VTMP+4}, v0, 4, 1
        v_lshl_or_b32 v{VTMP+3}, v{VTMP+4}, 1, v{VTMP+3}
        v_lshlrev_b32 v{VTMP+3}, 5, v{VTMP+3}
        v_and_b32 v{VTMP+4}, 3, v0
        v_lshl_or_b32 v{VTMP+3}, v{VTMP+4}, 3, v{VTMP+3}
        v_add_u32 v{VTR}, v{VTMP+2}, v{VTMP+3}
        """)

    def role_idx():
        a(f"""
        s_mul_i32 s{S_RI}, s{S_X}, 18
        s_add_u32 s{S_RI}, s{S_RI}, s{S_I}
        s_sub_u32 s{S_T0}, s{S_I}, 18
        s_lshl_b32 s{S_R}, s{S_T0}, 3
        s_add_u32 s{S_R}, s{S_R}, s{S_X}
        s_cmp_ge_u32 s{S_I}, 18
        s_cselect_b32 s{S_RI}, s{S_T0}, s{S_RI}
        """)

    R_ST = VR
    R_BA = VR + 1
    R_AA = VR + 5
    R_L16 = VR + 9
    R_HL = VR + 10
    R_XL = VR + 11
    R_F1 = VR + 13
    R_F2 = VR + 14
    R_F3 = VR + 15
    R_HW = VR + 16
    R_G0 = VR + 17
    R_G1 = VR + 18
    R_LS = VR + 19
    R_RW = VR + 20
    R_WG = VR + 21

    def cb_baddr(rowpitch, base_s):
        a(f"""
        v_mul_u32_u24 v{VTMP+1}, {rowpitch}, v{VJ1}
        v_add3_u32 v{VTMP+1}, v{VTMP+1}, v{VG16}, s{base_s}
        v_bfe_u32 v{VTMP+2}, v0, 1, 3
        v_mov_b32 v{VTMP+3}, {L_ZERO}
        """)
        for nt in range(4):
            a(f"""
            v_cmp_eq_u32 vcc, {nt}, v{VTMP+2}
            s_nop 1
            v_cndmask_b32 v{R_BA+nt}, v{VTMP+3}, v{VTMP+1}, vcc
            """)

    def cb_aaddr(base_s):
        for nt in range(4):
            a(f"v_xor_b32 v{R_AA+nt}, {nt*32}, v{VTR}")
        for nt in range(4):
            a(f"v_add_u32 v{R_AA+nt}, s{base_s}, v{R_AA+nt}")

    def cb_aread(nks, ksstride, dst=VW):
        for ks in range(nks):
            for nt in range(4):
                r = dst + (ks * 4 + nt) * 4
                a(f"ds_read_b64_tr_b16 {vr(r,2)}, v{R_AA+nt} offset:{ks*ksstride}")
                a(f"ds_read_b64_tr_b16 {vr(r+2,2)}, v{R_AA+nt} offset:{ks*ksstride+512}")

    def cb_bread(nks):
        for ks in range(nks):
            for nt in range(4):
                off = f" offset:{ks*64}" if ks else ""
                a(f"ds_read_b128 {vr(VB+(ks*4+nt)*4,4)}, v{R_BA+nt}{off}")

    def cb_mfma(nks, src=VW):
        n = nks * 4
        for k in range(n):
            a(f"s_waitcnt lgkmcnt({n-1-k})")
            c = "0" if k == 0 else vr(VD, 4)
            a(f"v_mfma_f32_16x16x32_bf16 {vr(VD,4)}, {vr(src+k*4,4)}, {vr(VB+k*4,4)}, {c}")
        a(f"""
        s_mov_b32 exec_lo, 0x00ff00ff
        s_mov_b32 exec_hi, 0x00ff00ff
        s_nop 5
        """)

    def f2_pre():
        a(f"""
        s_lshl_b32 s{S_T1}, s{S_CB}, 7
        s_add_u32 s{S_T1}, s{S_T1}, {L_HH}
        """)
        cb_baddr(64, S_T1)
        a(f"""
        v_lshl_add_u32 v{R_HW}, v0, 1, s{S_T1}
        v_bfe_u32 v{VTMP+1}, v0, 2, 1
        v_mad_u32_u24 v{VTMP+1}, v{VJ1}, 18, v{VTMP+1}
        v_mul_u32_u24 v{R_ST}, {144*128}, v{VTMP+1}
        v_bfe_u32 v{VTMP+1}, v0, 1, 1
        v_lshl_add_u32 v{VTMP+1}, v{VTMP+1}, 6, v{VG16}
        v_add_u32 v{R_ST}, v{R_ST}, v{VTMP+1}
        s_mul_i32 s{S_C1}, s{S_CB}, {2*144*128}
        s_lshl_b32 s{S_T0}, s{S_RI}, 7
        s_add_u32 s{S_C1}, s{S_C1}, s{S_T0}
        s_add_u32 s{S_C1}, s{S_C1}, {WS_ZP}
        v_lshlrev_b32 v{R_G0}, 2, v0
        v_and_b32 v{R_G1}, 31, v0
        v_lshlrev_b32 v{R_G1}, 2, v{R_G1}
        v_lshrrev_b32 v{R_LS}, 5, v0
        v_lshlrev_b32 v{R_LS}, 3, v{R_LS}
        s_lshl_b32 s{S_T1}, s{S_CB}, 12
        s_add_u32 s{S_T1}, s{S_T1}, {L_V}
        """)
        cb_aaddr(S_T1)

    def h_pre(cb=S_CB, sd=S_U2):
        srd(SRD_A, KA_X, 2304)
        a(f"""
        v_bfe_u32 v{R_HL}, v0, 4, 1
        v_mul_u32_u24 v{R_HL}, 1152, v{R_HL}
        v_and_b32 v{VTMP+1}, 15, v0
        v_lshl_add_u32 v{R_HL}, v{VTMP+1}, 3, v{R_HL}
        v_lshrrev_b32 v{VTMP+1}, 5, v0
        v_lshl_add_u32 v{R_HL}, v{VTMP+1}, 2, v{R_HL}
        s_lshl_b32 s{S_T0}, s{cb}, 7
        v_add_u32 v{R_HL}, s{S_T0}, v{R_HL}
        buffer_load_dword v{R_XL}, v{R_HL}, {sr(SRD_A,4)}, 0 offen
        s_lshl_b32 s{sd}, s{cb}, 12
        s_add_u32 s{sd}, s{sd}, {WS_YP}
        """)

    def h_gather():
        R = a.lab("HG")
        Dn = a.lab("HD")
        a(f"""
        s_waitcnt vmcnt(0)
        v_and_b32 v{R_XL+1}, 0xffff0000, v{R_XL}
        v_lshlrev_b32 v{R_XL}, 16, v{R_XL}
        s_mov_b32 s{S_CNT}, {cfg.TMO_G}
        """)
        a(f"{R}:")
        for k in range(4):
            a(f"buffer_load_dwordx4 {vr(VB+4*k,4)}, v{R_L16}, {sr(SRD_WS,4)}, s{S_C2} offen offset:{1024*k} sc1")
        for k in range(4):
            a(f"s_waitcnt vmcnt({3-k})")
            chk4(VTMP + 1, VB + 4 * k, k == 0)
            if k == 1:
                a(f"v_pk_add_f32 {vr(VB+16,2)}, {vr(VB,2)}, {vr(VB+4,2)}")
                a(f"v_pk_add_f32 {vr(VB+18,2)}, {vr(VB+2,2)}, {vr(VB+6,2)}")
            if k == 2:
                a(f"v_pk_add_f32 {vr(VB+16,2)}, {vr(VB+16,2)}, {vr(VB+8,2)}")
                a(f"v_pk_add_f32 {vr(VB+18,2)}, {vr(VB+18,2)}, {vr(VB+10,2)}")
        a(f"v_pk_add_f32 {vr(VB+16,2)}, {vr(VB+16,2)}, {vr(VB+12,2)}")
        a(f"v_pk_add_f32 {vr(VB+18,2)}, {vr(VB+18,2)}, {vr(VB+14,2)}")
        chk_end(VTMP + 1, R, Dn)
        q = VB + 16
        a(f"""
        v_permlane32_swap_b32 v{q}, v{q+2}
        v_permlane32_swap_b32 v{q+1}, v{q+3}
        v_pk_add_f32 {vr(q,2)}, {vr(q,2)}, {vr(q+2,2)}
        v_cvt_pk_bf16_f32 v{q}, v{q}, v{q+1}
        v_and_b32 v{q+1}, 0xffff0000, v{q}
        v_lshlrev_b32 v{q}, 16, v{q}
        v_add_f32 v{q}, v{q}, v{R_XL}
        v_add_f32 v{q+1}, v{q+1}, v{R_XL+1}
        v_cvt_pk_bf16_f32 v{q}, v{q}, v{q+1}
        ds_write_b32 v{R_HL}, v{q} offset:{L_XN}
        s_waitcnt lgkmcnt(0)
        """)

    R_VF = VW + 56
    R_VC = VW + 60

    HGD, HGQ = VW, VW + 52

    def h_finish(to_lds=False):
        q = HGQ
        a(f"""
        v_permlane32_swap_b32 v{q}, v{q+2}
        v_permlane32_swap_b32 v{q+1}, v{q+3}
        v_pk_add_f32 {vr(q,2)}, {vr(q,2)}, {vr(q+2,2)}
        v_cvt_pk_bf16_f32 v{q}, v{q}, v{q+1}
        v_and_b32 v{q+1}, 0xffff0000, v{q}
        v_lshlrev_b32 v{q}, 16, v{q}
        v_add_f32 v{q}, v{q}, v{R_XL}
        v_add_f32 v{q+1}, v{q+1}, v{R_XL+1}
        v_cvt_pk_bf16_f32 v{q}, v{q}, v{q+1}
        """)
        if to_lds:
            a(f"""
            ds_write_b32 v{R_HL}, v{q} offset:{L_XN}
            s_mov_b64 exec, 1
            ds_add_u32 v{VZ}, v{VONE} offset:{L_XNF}
            s_mov_b64 exec, -1
            """)
            return
        a(f"""
        v_mov_b32 v{q+2}, s{S_TAGF}
        v_mov_b32 v{q+1}, v{q}
        v_mov_b32 v{q+3}, s{S_TAGF}
        s_nop 0
        v_permlane32_swap_b32 v{q}, v{q+1}
        s_mov_b32 exec_hi, 0
        """)
        pub(q, R_L16, S_U3)
        a("s_mov_b64 exec, -1")

    F_ALL = BIAS + P_R0 + NPF + (108 if cfg.W2MID else 72)

    def f_frags(k0, k1):
        for ks in range(k0, k1):
            a(f"ds_read_b64_tr_b16 {vr(VW+16+ks*4,2)}, v{R_F1} offset:{ks*2048}")
            a(f"ds_read_b64_tr_b16 {vr(VW+16+ks*4+2,2)}, v{R_F1} offset:{ks*2048+256}")

    def h_get(on_retry=None, sleep=0, sa=S_U2, to_lds=False):
        if cfg.MG:
            for d in range(4):
                a(f"v_mov_b32 v{HGQ+d}, 0")

        def h_valid(k, inorder):
            if inorder and k == 0:
                return
            p = HGD if inorder and k == 1 else HGQ
            a(f"v_pk_add_f32 {vr(HGQ,2)}, {vr(p,2)}, {vr(HGD+4*k,2)}")
            a(f"v_pk_add_f32 {vr(HGQ+2,2)}, {vr(p+2,2)}, {vr(HGD+4*k+2,2)}")

        mgather(4, HGD, R_L16, sa, h_valid, on_retry=on_retry, sleep=sleep)
        h_finish(to_lds)


    def h_direct(out_label):
        W1 = a.lab("DW")
        W2 = a.lab("DX")
        a(f"s_mov_b32 s{S_CNT}, {cfg.TMO_L}")
        a(f"{W1}:")
        a(f"""
        ds_read_b64 {vr(VTMP,2)}, v{VZ} offset:{L_PROG}
        s_sub_u32 s{S_CNT}, s{S_CNT}, 1
        s_cbranch_scc1 {W2}
        s_waitcnt lgkmcnt(0)
        v_readfirstlane_b32 s{S_T1}, v{VTMP+1}
        v_readfirstlane_b32 s{S_T0}, v{VTMP}
        s_cmp_ge_u32 s{S_T1}, 10
        s_cbranch_scc1 {out_label}
        s_cmp_lt_u32 s{S_T0}, {BIAS + P_R0 + NPF + cfg.DTRIG}
        s_cbranch_scc1 {W1}
        """)
        a(f"{W2}:")

        def rt():
            a(f"""
            ds_read_b32 v{VTMP}, v{VZ} offset:{L_XNF}
            s_waitcnt lgkmcnt(0)
            v_readfirstlane_b32 s{S_T0}, v{VTMP}
            s_cmp_ge_u32 s{S_T0}, 10
            s_cbranch_scc1 {out_label}
            """)

        h_get(on_retry=rt, sa=S_C2, to_lds=True)

    def x_unpack():
        a(f"""
        s_waitcnt vmcnt(0)
        v_and_b32 v{R_XL+1}, 0xffff0000, v{R_XL}
        v_lshlrev_b32 v{R_XL}, 16, v{R_XL}
        """)

    def gr_pre(slot_s):
        a(f"""
        v_and_b32 v{R_RW}, 7, v0
        v_lshlrev_b32 v{R_RW}, 2, v{R_RW}
        v_lshrrev_b32 v{VTMP+1}, 4, v0
        v_add_u32 v{R_RW}, v{VTMP+1}, v{R_RW}
        v_mul_u32_u24 v{R_RW}, 48, v{R_RW}
        s_lshl_b32 s{S_T0}, s{slot_s}, 2
        v_add_u32 v{R_RW}, s{S_T0}, v{R_RW}
        """)

    def gr_zaddr(dst_s):
        a(f"""
        s_mul_i32 s{dst_s}, s{S_R}, {144*128}
        s_lshl_b32 s{S_T0}, s{S_CB}, 11
        s_add_u32 s{dst_s}, s{dst_s}, s{S_T0}
        s_add_u32 s{dst_s}, s{dst_s}, {WS_ZP}
        """)

    def gather_reduce(nld, vaddr, soff, lacc):
        q = VB + 8
        if cfg.PIPE and nld == 2:
            q = VB + 24
        elif cfg.MG:
            for d in range(4):
                a(f"v_mov_b32 v{q+d}, 0")

        def g_valid(k, inorder):
            if inorder and nld == 2 and k == 0:
                return
            if inorder and nld == 1:
                for d in range(4):
                    a(f"v_mov_b32 v{q+d}, v{VB+d}")
                return
            p = VB if inorder else q
            a(f"v_pk_add_f32 {vr(q,2)}, {vr(p,2)}, {vr(VB+4*k,2)}")
            a(f"v_pk_add_f32 {vr(q+2,2)}, {vr(p+2,2)}, {vr(VB+4*k+2,2)}")

        if cfg.PIPE and nld == 2:
            def z_ok(b):
                a(f"v_pk_add_f32 {vr(q,2)}, {vr(b,2)}, {vr(b+4,2)}")
                a(f"v_pk_add_f32 {vr(q+2,2)}, {vr(b+2,2)}, {vr(b+6,2)}")
            pgather(2, [VB, VB + 8, VB + 16][:cfg.PIPE], vaddr, soff, z_ok)
        else:
            mgather(nld, VB, vaddr, soff, g_valid, sleep=(cfg.ZSLEEP if nld == 2 else 2))
        a(f"""
        v_permlane32_swap_b32 v{q}, v{q+2}
        v_permlane32_swap_b32 v{q+1}, v{q+3}
        v_pk_add_f32 {vr(q,2)}, {vr(q,2)}, {vr(q+2,2)}
        s_nop 1
        v_permlane16_swap_b32 v{q}, v{q+1}
        v_add_f32 v{q}, v{q}, v{q+1}
        s_nop 1
        v_add_f32_dpp v{q}, v{q}, v{q} row_ror:8 {DPPM}
        ds_write_b32 v{R_RW}, v{q} offset:{lacc}
        s_waitcnt lgkmcnt(0)
        """)

    if cfg.STAMP:
        a(f"s_memrealtime {sr(100,2)}")
        a(f"s_memtime {sr(78,2)}")
        for k in range(80, 100, 2):
            a(f"s_mov_b64 {sr(k,2)}, 0")
    if cfg.DIAG:
        a("s_memrealtime s[76:77]")
    a(f"""
    s_cmp_ge_u32 s{S_WG}, 256
    s_cbranch_scc1 L_EXIT
    s_load_dwordx16 {sr(16,16)}, s[0:1], 0
    s_load_dwordx8 {sr(32,8)}, s[0:1], 64
    """)
    if cfg.HOPS:
        a(f"""
        v_cmp_gt_u32 vcc, 128, v0
        s_getpc_b64 {sr(S_PC,2)}
        """)
        a("L_PCREF:")
        a(f"""
        v_lshlrev_b32 v1, 7, v0
        s_cbranch_vccz L_NOPF
        v_min_u32 v1, L_CODE_END-L_PCREF-4, v1
        global_load_dword v167, v1, {sr(S_PC,2)}
        """)
        a("L_NOPF:")
    a(f"""
    v_lshrrev_b32 v1, 6, v0
    v_and_b32 v0, 63, v0
    v_readfirstlane_b32 s{S_T1}, v1
    s_and_b32 s{S_X}, s{S_WG}, 7
    s_lshr_b32 s{S_I}, s{S_WG}, 3
    s_lshr_b32 s{S_T0}, s{S_I}, 4
    s_lshl_b32 s{S_KVH}, s{S_X}, 1
    s_add_u32 s{S_KVH}, s{S_KVH}, s{S_T0}
    s_bfe_u32 s{S_B}, s{S_I}, 0x10003
    s_and_b32 s{S_S}, s{S_I}, 7
    s_mov_b32 s{S_M8}, 0x00030003
    s_mov_b32 s{S_M8+1}, 0x00030003
    v_mov_b32 v{VZ}, 0
    s_sub_u32 s{S_WAVE}, s{S_T1}, 2
    s_sub_u32 s{S_T0}, 9, s{S_T1}
    s_cmp_lt_u32 s{S_T1}, 2
    s_cselect_b32 s{S_WAVE}, s{S_T0}, s{S_WAVE}
    s_min_u32 s{S_CB}, s{S_WAVE}, 8
    s_cmp_eq_u32 s{S_WAVE}, 8
    s_cbranch_scc1 L_COMM
    s_cmp_eq_u32 s{S_WAVE}, 9
    s_cbranch_scc0 L_COMP
    """)

    LA = VB
    LKV = VB + 4
    LF = VB + 6
    LP = VB + 10
    LT = VB + 11
    LLIN = VB + 14
    pol = {"late": False}

    def coffs(dst, pitch):
        a(f"""
        v_lshrrev_b32 v{LT}, 3, v0
        v_mul_u32_u24 v{LT}, {pitch}, v{LT}
        v_bfe_u32 v{LT+1}, v0, 4, 1
        v_lshlrev_b32 v{LT+1}, 1, v{LT+1}
        v_and_b32 v{LT+2}, 7, v0
        v_xor_b32 v{LT+1}, v{LT+1}, v{LT+2}
        v_lshl_add_u32 v{dst}, v{LT+1}, 4, v{LT}
        v_xor_b32 v{dst+1}, 64, v{dst}
        v_add_u32 v{dst+1}, {8*pitch-1024}, v{dst+1}
        v_add_u32 v{dst+2}, {2*(8*pitch-1024)}, v{dst}
        v_add_u32 v{dst+3}, {2*(8*pitch-1024)}, v{dst+1}
        """)

    def group(srdr, vo, soff, n=4):
        kv = vo[0] == LKV or (vo[0] == LA and not pol["late"])
        nt = " nt" if (cfg.NTKV if kv else cfg.NTW) else ""
        for j in range(n):
            off = f" offset:{1024*j}" if j else ""
            a(f"buffer_load_dwordx4 v{vo[j]}, {sr(srdr,4)}, s{soff} offen{off}{nt} lds")

    def report(n, d):
        a(f"""
        v_add_u32 v{LP}, {n}, v{LP}
        s_waitcnt vmcnt({d})
        ds_write_b32 v{VZ}, v{LP} offset:{L_PROG}
        """)

    def redepth(dp, dn):
        if dn < dp:
            assert (dp - dn) % 4 == 0
            for k in range(dp - 4, dn - 1, -4):
                report(4, k)
        elif dn > dp:
            a(f"v_subrev_u32 v{LP}, {dn-dp}, v{LP}")

    def kvstep():
        a(f"""
        s_add_u32 s{S_U0}, s{S_U0}, 4096
        s_and_b32 s{S_U0}, s{S_U0}, 0xffff
        s_or_b32 s{S_U0}, s{S_U0}, s{S_V0}
        """)

    def stream(srdr, vo, soff_step, ngroups, d, m0step=4096):
        L = a.lab("ST")
        a(f"s_mov_b32 s{S_U1}, {ngroups}")
        a(f"{L}:")
        group(srdr, vo, S_U0)
        if soff_step == "kv":
            kvstep()
        else:
            a(f"s_add_u32 s{S_U0}, s{S_U0}, {soff_step}")
        if m0step:
            a(f"s_add_u32 m0, m0, {m0step}")
        report(4, d)
        a(f"""
        s_sub_u32 s{S_U1}, s{S_U1}, 1
        s_cmp_lg_u32 s{S_U1}, 0
        s_cbranch_scc1 {L}
        """)

    a("L_LOAD:")
    a("s_setprio 3")
    coffs(LA, 8192)
    a(f"""
    v_lshrrev_b32 v{LT}, 4, v0
    v_lshlrev_b32 v{LT+1}, 1, v{LT}
    v_and_b32 v{LT+2}, 15, v0
    v_xor_b32 v{LT+1}, v{LT+1}, v{LT+2}
    v_lshlrev_b32 v{LT}, 8, v{LT}
    v_lshl_add_u32 v{LKV}, v{LT+1}, 4, v{LT}
    v_xor_b32 v{LKV+1}, 128, v{LKV}
    s_lshr_b32 s{S_T0}, s{S_I}, 3
    s_mul_i32 s{S_U0}, s{S_T0}, {144*8192}
    s_lshl_b32 s{S_T0}, s{S_X}, 10
    s_add_u32 s{S_U0}, s{S_U0}, s{S_T0}
    s_lshl_b32 s{S_T0}, s{S_S}, 7
    s_add_u32 s{S_U0}, s{S_U0}, s{S_T0}
    s_lshl_b32 s{S_V0}, s{S_B}, 4
    s_add_u32 s{S_V0}, s{S_V0}, s{S_KVH}
    s_lshl_b32 s{S_V0}, s{S_V0}, 21
    s_lshl_b32 s{S_T0}, s{S_S}, 16
    s_add_u32 s{S_V0}, s{S_V0}, s{S_T0}
    s_add_u32 s{S_V0}, s{S_V0}, {6144*256}
    s_mul_i32 s{S_V1}, s{S_WG}, 0x2f
    s_lshr_b32 s{S_T0}, s{S_WG}, 4
    s_add_u32 s{S_V1}, s{S_V1}, s{S_T0}
    s_and_b32 s{S_V1}, s{S_V1}, 15
    s_lshl_b32 s{S_V1}, s{S_V1}, 12
    s_or_b32 s{S_V1}, s{S_V1}, s{S_V0}
    s_mov_b32 m0, {L_WQ}
    s_waitcnt lgkmcnt(0)
    """)
    stamp(1)
    srd(SRD_A, KA_WQ, 576 * 4096 * 2)
    la = [LA, LA + 1, LA + 2, LA + 3]
    lkv = [LKV, LKV + 1, LKV, LKV + 1]
    lf = [LF, LF + 1, LF + 2, LF + 3]
    llin = [LLIN] * 4
    sched = cfg.SCHED
    a(f"""
    s_mov_b32 s{S_U2}, s{S_U0}
    s_mov_b32 s{S_U0}, s{S_V1}
    """)
    issued = 0
    nw = nk = 0
    barrier_done = False
    srdb = False
    for ch in sched:
        n = 4
        if not barrier_done and issued + 4 > cfg.D0:
            srd(SRD_C, KA_V, 2 * 16 * 8192 * 256)
            srd(SRD_WS, KA_WS, WS_SIZE)
            a(f"""
            s_load_dword s{S_EP}, {sr(KA_WS,2)}, {WS_EPOCH}
            v_mov_b32 v{LP}, {BIAS - cfg.D0 + issued}
            """)
            stamp(2)
            a("s_barrier")
            if cfg.MOVEC:
                a("s_branch L_LOAD2")
                a("; MOVE_HERE")
                a("L_LOAD2:")
            barrier_done = True
        if ch == "W":
            n = 4 if nw < 4 else 2
            a(f"s_mov_b32 m0, {L_WQ + 4096*nw}")
            if nw:
                a(f"s_add_u32 s{S_U2}, s{S_U2}, {32*8192}")
            else:
                a("s_nop 0")
            group(SRD_A, la, S_U2, n)
            nw += 1
            if nw == 5:
                P_WQE = issued + n
        else:
            if not srdb:
                srd(SRD_B, KA_K, 2 * 16 * 8192 * 256)
                srdb = True
            a(f"s_mov_b32 m0, {L_K + 4096*nk}")
            if nk:
                kvstep()
            else:
                a("s_nop 0")
            group(SRD_B, lkv, S_U0)
            nk += 1
        issued += n
        if barrier_done:
            report(n, cfg.D0)
    assert nw == 5 and barrier_done and nk <= 8
    PRE = nk
    a(f"s_mov_b32 m0, {L_K + 4096*nk}")
    kvstep()
    redepth(cfg.D0, D)
    cfg._pwq = P_WQE
    lane_setup()
    role_idx()
    coffs(LA, 1152)
    pol["late"] = True
    a(f"""
    v_lshlrev_b32 v{LLIN}, 4, v0
    v_lshrrev_b32 v{LT}, 2, v0
    v_mul_u32_u24 v{LT}, 9216, v{LT}
    v_lshrrev_b32 v{LT+1}, 5, v0
    v_lshlrev_b32 v{LT+1}, 1, v{LT+1}
    v_and_b32 v{LT+2}, 3, v0
    v_xor_b32 v{LT+1}, v{LT+1}, v{LT+2}
    v_lshl_add_u32 v{LF}, v{LT+1}, 4, v{LT}
    v_add_u32 v{LF+1}, {16*9216-1024}, v{LF}
    v_add_u32 v{LF+2}, {2*(16*9216-1024)}, v{LF}
    v_add_u32 v{LF+3}, {3*(16*9216-1024)}, v{LF}
    """)
    stream(SRD_B, lkv, "kv", 4, D)
    f2_pre()
    stream(SRD_B, lkv, "kv", 12 - PRE, D)
    a(f"""
    s_mov_b32 m0, {L_V}
    s_mov_b32 s{S_U0}, s{S_V1}
    """)
    stamp(6)
    srd(SRD_A, KA_WO, 4096 * 576 * 2)
    assert 4 * cfg.PFPOS >= D
    if cfg.VD2:
        assert cfg.PFPOS == 16
        stream(SRD_C, lkv, "kv", cfg.VPOS, D)
        redepth(D, cfg.VD2)
        stream(SRD_C, lkv, "kv", 16 - cfg.VPOS, cfg.VD2)
        redepth(cfg.VD2, cfg.D3)
        D = cfg.D3
    else:
        stream(SRD_C, lkv, "kv", cfg.PFPOS, D)
    poll_ge(L_KD, 8, LT, sleep=0)
    tags_setup()
    a(f"""
    s_mov_b32 s{S_PC}, s{S_U0}
    s_mul_i32 s{S_U0}, s{S_X}, {512*1152}
    s_sub_u32 s{S_T0}, s{S_I}, 18
    s_cmp_lt_u32 s{S_T0}, {NW}
    s_cbranch_scc1 L_LOADW
    s_add_u32 s{S_U3}, s{S_U0}, {128*1152}
    s_mov_b32 s{S_V1}, 0
    s_mov_b32 m0, {L_WQ}
    """)
    if cfg.GATE2:
        redepth(D, 0)
        poll_ge(L_KD, 16, LT, sleep=0)
        redepth(0, D)
    if cfg.C3:
        assert cfg.PFPOS == 16
        a(f"""
        s_lshr_b32 s{S_T1}, s{S_RI}, 1
        s_and_b32 s{S_T1}, s{S_T1}, 7
        s_cmp_eq_u32 s{S_T1}, 3
        s_cselect_b32 s{S_V1}, {NPF}, 0
        s_cmp_ge_u32 s{S_I}, 18
        s_cselect_b32 s{S_V1}, 0, s{S_V1}
        s_cmp_lg_u32 s{S_V1}, 0
        s_cbranch_scc1 L_NOPFW
        """)
    a(f"""
    s_sub_u32 s{S_T0}, s{S_I}, {NW}
    s_cmp_lt_u32 s{S_I}, 18
    s_cselect_b32 s{S_T3}, s{S_I}, s{S_T0}
    s_mul_i32 s{S_T0}, s{S_T3}, 5
    s_min_u32 s{S_T0}, s{S_T0}, 103
    s_lshl_b32 s{S_T0}, s{S_T0}, 12
    s_add_u32 s{S_U0}, s{S_U3}, s{S_T0}
    """)
    stream(SRD_A, llin, 4096, 5, D, m0step=0)
    if cfg.RED:
        a(f"""
        s_add_u32 s{S_T3}, s{S_T3}, 11
        s_sub_u32 s{S_T0}, s{S_T3}, 23
        s_cmp_ge_u32 s{S_T3}, 23
        s_cselect_b32 s{S_T3}, s{S_T0}, s{S_T3}
        s_mul_i32 s{S_T0}, s{S_T3}, 5
        s_min_u32 s{S_T0}, s{S_T0}, 103
        s_add_u32 s{S_T0}, s{S_T0}, {5 - cfg.RED}
        s_lshl_b32 s{S_T0}, s{S_T0}, 12
        s_add_u32 s{S_U0}, s{S_U3}, s{S_T0}
        """)
        stream(SRD_A, llin, 4096, cfg.RED, D, m0step=0)
    if cfg.C3:
        a(f"""
        s_cmp_lt_u32 s{S_I}, 27
        s_cbranch_scc1 L_NOPFW
        s_cmp_ge_u32 s{S_I}, 31
        s_cbranch_scc1 L_NOPFW
        s_sub_u32 s{S_T1}, 3, s{S_X}
        s_and_b32 s{S_T1}, s{S_T1}, 7
        s_lshl_b32 s{S_T0}, s{S_T1}, 1
        s_sub_u32 s{S_T2}, s{S_I}, 27
        s_cmp_lt_u32 s{S_T2}, 2
        s_cbranch_scc1 L_PFX
        s_cmp_lg_u32 s{S_T1}, 0
        s_cbranch_scc1 L_NOPFW
        s_mov_b32 s{S_T0}, 14
        """)
        a("L_PFX:")
        a(f"""
        s_add_u32 s{S_T0}, s{S_T0}, s{S_T2}
        s_mul_i32 s{S_T0}, s{S_T0}, 5
        s_lshl_b32 s{S_T0}, s{S_T0}, 12
        s_add_u32 s{S_U0}, s{S_U3}, s{S_T0}
        """)
        stream(SRD_A, llin, 4096, 5, D, m0step=0)
        a("L_NOPFW:")
    a(f"""
    s_mov_b32 m0, {L_V + 4096*cfg.PFPOS}
    s_mov_b32 s{S_U0}, s{S_PC}
    """)
    if cfg.PFPOS < 16:
        stream(SRD_C, lkv, "kv", 16 - cfg.PFPOS, D)
    stamp(3)
    srd(SRD_C, KA_W2, 0 if cfg.QUIET else 4608 * 576 * 2)
    a(f"""
    s_cmp_ge_u32 s{S_I}, 27
    s_cbranch_scc1 L_LOADH
    s_bitcmp1_b32 s{S_I}, 0
    s_cselect_b32 s{S_T0}, s{KA_W3}, s{KA_W1}
    s_cselect_b32 s{S_T1}, s{KA_W3+1}, s{KA_W1+1}
    s_cselect_b32 s{S_T2}, s{KA_W1}, s{KA_W3}
    s_cselect_b32 s{S_T3}, s{KA_W1+1}, s{KA_W3+1}
    s_cselect_b32 s{S_PC}, 36864, 0
    s_cselect_b32 s{S_PC+1}, 0, 36864
    s_add_u32 s{S_PC}, s{S_PC}, {L_WT}
    s_add_u32 s{S_PC+1}, s{S_PC+1}, {L_WT}
    """)
    srd(SRD_A, S_T0, 0 if cfg.QUIET else 576 * 4608 * 2)
    srd(SRD_B, S_T2, 0 if cfg.QUIET else 576 * 4608 * 2)
    if cfg.GATE:
        redepth(D, 0)
        poll_ge(L_KD, 16, LT, sleep=0)
        redepth(0, cfg.DF2)
    else:
        redepth(D, cfg.DF)
    a(f"""
    s_lshl_b32 s{S_U0}, s{S_RI}, 6
    s_mov_b32 m0, s{S_PC}
    s_mov_b32 s{S_U1}, 0
    s_mov_b32 s{S_U2}, {1 if cfg.GATE else 0}
    """)
    if cfg.W2MID:
        a("L_FA:")
        group(SRD_A, lf, S_U0)
        a(f"""
        ds_read_b32 v{LT}, v{VZ} offset:{L_KD}
        s_add_u32 s{S_U0}, s{S_U0}, {64*9216}
        s_add_u32 m0, m0, 4096
        s_add_u32 s{S_U1}, s{S_U1}, 1
        v_add_u32 v{LP}, 4, v{LP}
        s_cmp_lg_u32 s{S_U2}, 0
        s_cbranch_scc1 L_FA2
        s_waitcnt vmcnt({cfg.DF}) lgkmcnt(0)
        ds_write_b32 v{VZ}, v{LP} offset:{L_PROG}
        v_readfirstlane_b32 s{S_T0}, v{LT}
        s_cmp_lt_u32 s{S_T0}, 16
        s_cbranch_scc1 L_FA3
        s_mov_b32 s{S_U2}, 1
        v_subrev_u32 v{LP}, {cfg.DF2-cfg.DF}, v{LP}
        v_add_u32 v{LP}, s{S_V1}, v{LP}
        s_branch L_FA3
        """)
        a("L_FA2:")
        a(f"""
        s_waitcnt vmcnt({cfg.DF2})
        ds_write_b32 v{VZ}, v{LP} offset:{L_PROG}
        """)
        a("L_FA3:")
        a(f"""
        s_cmp_lt_u32 s{S_U1}, 9
        s_cbranch_scc1 L_FA
        s_cmp_lg_u32 s{S_U2}, 0
        s_cbranch_scc1 L_FA4
        """)
        poll_ge(L_KD, 16, LT, sleep=0)
        a(f"v_subrev_u32 v{LP}, {cfg.DF2-cfg.DF}, v{LP}")
        a(f"v_add_u32 v{LP}, s{S_V1}, v{LP}")
        a("L_FA4:")
        stamp(5)
        a(f"""
        s_mul_i32 s{S_U0}, s{S_RI}, {32*1152}
        s_mov_b32 m0, {L_V}
        """)
        stream(SRD_C, la, 128, 9, cfg.DF2)
        stamp(8)
        a(f"""
        s_lshl_b32 s{S_U0}, s{S_RI}, 6
        s_mov_b32 m0, s{S_PC+1}
        """)
        stream(SRD_B, lf, 64 * 9216, 9, cfg.DF2)
        redepth(cfg.DF2, 0)
        stamp(4)
        a("s_setprio 0")
        a("s_branch L_F2")

    else:
        a("L_FA:")
        group(SRD_A, lf, S_U0)
        a(f"""
        ds_read_b32 v{LT}, v{VZ} offset:{L_KD}
        s_add_u32 s{S_U0}, s{S_U0}, {64*9216}
        s_add_u32 m0, m0, 4096
        s_add_u32 s{S_U1}, s{S_U1}, 1
        v_add_u32 v{LP}, 4, v{LP}
        s_cmp_lg_u32 s{S_U1}, 9
        s_cbranch_scc1 L_FA1
        s_mov_b32 s{SRD_A}, s{SRD_B}
        s_mov_b32 s{SRD_A+1}, s{SRD_B+1}
        s_lshl_b32 s{S_U0}, s{S_RI}, 6
        s_mov_b32 m0, s{S_PC+1}
        """)
        stamp(5)
        a("L_FA1:")
        a(f"""
        s_cmp_lg_u32 s{S_U2}, 0
        s_cbranch_scc1 L_FA2
        s_waitcnt vmcnt({cfg.DF}) lgkmcnt(0)
        ds_write_b32 v{VZ}, v{LP} offset:{L_PROG}
        v_readfirstlane_b32 s{S_T0}, v{LT}
        s_cmp_lt_u32 s{S_T0}, 16
        s_cbranch_scc1 L_FA3
        s_mov_b32 s{S_U2}, 1
        v_subrev_u32 v{LP}, {cfg.DF2-cfg.DF}, v{LP}
        v_add_u32 v{LP}, s{S_V1}, v{LP}
        s_branch L_FA3
        """)
        a("L_FA2:")
        a(f"""
        s_waitcnt vmcnt({cfg.DF2})
        ds_write_b32 v{VZ}, v{LP} offset:{L_PROG}
        """)
        a("L_FA3:")
        a(f"""
        s_cmp_lt_u32 s{S_U1}, 18
        s_cbranch_scc1 L_FA
        s_cmp_lg_u32 s{S_U2}, 0
        s_cbranch_scc1 L_FA4
        """)
        poll_ge(L_KD, 16, LT, sleep=0)
        a(f"v_subrev_u32 v{LP}, {cfg.DF2-cfg.DF}, v{LP}")
        a(f"v_add_u32 v{LP}, s{S_V1}, v{LP}")
        a("L_FA4:")
        stamp(8)
        a(f"""
        s_mul_i32 s{S_U0}, s{S_RI}, {32*1152}
        s_mov_b32 m0, {L_V}
        """)
        NG1 = (cfg.DF2 + 3) // 4
        assert NG1 <= 9
        stream(SRD_C, la, 128, NG1, cfg.DF2)
        for g in range(9 - NG1):
            group(SRD_C, la, S_U0)
            a(f"""
            s_add_u32 m0, m0, 4096
            s_add_u32 s{S_U0}, s{S_U0}, 128
            """)
        stamp(4)
        a(f"""
        v_mov_b32 v{LP}, {BIAS + P_R0 + NPF + 108}
        s_waitcnt vmcnt(0)
        ds_write_b32 v{VZ}, v{LP} offset:{L_PROG}
        s_setprio 0
        """)
        stamp(0)
        if cfg.HYB:
            h_pre(S_CB, S_C2)
            x_unpack()
            h_direct("L_F2")
        a("s_branch L_F2")

    a("L_LOADH:")
    NHG = 33
    a(f"""
    s_sub_u32 s{S_T0}, s{S_I}, 27
    s_mul_i32 s{S_T0}, s{S_T0}, {NHG}
    s_min_u32 s{S_T0}, s{S_T0}, {162-NHG}
    s_lshl_b32 s{S_T0}, s{S_T0}, 12
    s_mul_i32 s{S_U0}, s{S_X}, {576*1152}
    s_add_u32 s{S_U0}, s{S_U0}, s{S_T0}
    s_mov_b32 m0, {L_WQ}
    """)
    HG = cfg.GATE or cfg.HDELAY
    if HG:
        redepth(D, 0)
    else:
        stream(SRD_C, llin, 4096, D // 4, D, m0step=0)
    poll_ge(L_KD, 16, LT, sleep=0)
    for _ in range(max(0, cfg.HDELAY - 1)):
        a("s_sleep 8")
    a(f"s_mov_b32 s{S_U1}, {NHG - (0 if HG else D//4)}")
    a("L_HB:")
    group(SRD_C, llin, S_U0)
    a(f"""
    s_add_u32 s{S_U0}, s{S_U0}, 4096
    s_waitcnt vmcnt({cfg.DL})
    s_sub_u32 s{S_U1}, s{S_U1}, 1
    s_cmp_lg_u32 s{S_U1}, 0
    s_cbranch_scc1 L_HB
    s_waitcnt vmcnt(0)
    """)
    stamp(0)
    a("s_waitcnt lgkmcnt(0)")
    endpgm()

    a("L_LOADW:")
    a(f"""
    s_lshl_b32 s{S_T0}, s{S_RI}, 7
    s_add_u32 s{S_U0}, s{S_U0}, s{S_T0}
    s_mov_b32 m0, {L_WT}
    """)
    DW = cfg.DW or D
    if cfg.DW:
        assert cfg.PFPOS == 16
        redepth(D, DW)
    stream(SRD_A, la, 32 * 1152, 4, DW)
    a(f"""
    s_mov_b32 s{S_PC+1}, s{S_U0}
    s_mov_b32 m0, {L_V + 4096*cfg.PFPOS}
    s_mov_b32 s{S_U0}, s{S_PC}
    """)
    if cfg.PFPOS < 16:
        stream(SRD_C, lkv, "kv", 16 - cfg.PFPOS, D)
    stamp(3)
    a(f"""
    s_mov_b32 m0, {L_WT + 4*4096}
    s_mov_b32 s{S_U0}, s{S_PC+1}
    """)
    stream(SRD_A, la, 32 * 1152, 12, DW)
    redepth(DW, 0)
    stamp(0)
    a("s_waitcnt lgkmcnt(0)")
    endpgm()

    A_QA, A_HD, A_PA, A_PW, A_VA, A_PUB, A_OS, A_H32 = VA, VA + 1, VA + 2, VA + 3, VA + 4, VA + 5, VA + 6, VA + 7
    a("L_COMP:")
    lane_setup()
    role_idx()
    a("s_waitcnt lgkmcnt(0)")
    srd(SRD_WS, KA_WS, WS_SIZE)
    a(f"""
    s_load_dword s{S_EP}, {sr(KA_WS,2)}, {WS_EPOCH}
    s_cmp_lg_u32 s{S_WAVE}, 7
    s_cbranch_scc1 L_NOTOUCH
    v_lshlrev_b32 v{VD}, 7, v0
    v_and_b32 v{VD+1}, 0x1ff, v{VD}
    s_lshr_b32 s{S_T0}, s{S_I}, 4
    s_lshl_b32 s{S_T0}, s{S_T0}, 16
    s_lshl_b32 s{S_T1}, s{S_X}, 13
    s_add_u32 s{S_T0}, s{S_T0}, s{S_T1}
    s_and_b32 s{S_T1}, s{S_I}, 15
    s_lshl_b32 s{S_T1}, s{S_T1}, 9
    s_add_u32 s{S_T0}, s{S_T0}, s{S_T1}
    s_add_u32 s{S_T0}, s{S_T0}, {WS_QP + WS_LOC}
    buffer_load_dword v{VD+4}, v{VD+1}, {sr(SRD_WS,4)}, s{S_T0} offen
    v_and_b32 v{VD+2}, 0x3ff, v{VD}
    s_lshl_b32 s{S_T0}, s{S_X}, 15
    s_lshl_b32 s{S_T1}, s{S_I}, 10
    s_add_u32 s{S_T0}, s{S_T0}, s{S_T1}
    s_add_u32 s{S_T0}, s{S_T0}, {WS_OP + WS_LOC}
    buffer_load_dword v{VD+5}, v{VD+2}, {sr(SRD_WS,4)}, s{S_T0} offen
    s_lshl_b32 s{S_T0}, s{S_X}, 10
    s_add_u32 s{S_T0}, s{S_T0}, {WS_ST + WS_LOC}
    buffer_load_dword v{VD+6}, v{VD+2}, {sr(SRD_WS,4)}, s{S_T0} offen
    v_and_b32 v{VD+3}, 0xff, v{VD}
    s_lshl_b32 s{S_T0}, s{S_X}, 13
    s_lshl_b32 s{S_T1}, s{S_I}, 8
    s_add_u32 s{S_T0}, s{S_T0}, s{S_T1}
    s_add_u32 s{S_T0}, s{S_T0}, {WS_HB + WS_LOC}
    buffer_load_dword v{VD+7}, v{VD+3}, {sr(SRD_WS,4)}, s{S_T0} offen
    """)
    a("L_NOTOUCH:")
    a("s_barrier")
    if cfg.HOPS:
        a("s_mov_b64 exec, 0")
        for r in range(8):
            a(f"""
            s_cmp_eq_u32 s{S_WAVE}, {r}
            s_cbranch_scc1 HOPR_{r}
            """)
        a("L_RESUME:")
        a("s_mov_b64 exec, -1")
    a("s_waitcnt lgkmcnt(0)")
    tags_setup()
    stamp(0)
    a(f"""
    s_cmp_ge_u32 s{S_WAVE}, 4
    s_cbranch_scc1 L_NOQ
    s_lshl_b32 s{S_T0}, s{S_WAVE}, 5
    v_xor_b32 v{VTMP+4}, s{S_T0}, v{VTR}
    v_add_u32 v{VTMP+4}, {L_WQ}, v{VTMP+4}
    v_lshrrev_b32 v{VTMP+1}, 2, v0
    v_lshlrev_b32 v{VTMP+5}, 7, v{VTMP+1}
    v_bfe_u32 v{VTMP+2}, v0, 3, 1
    v_bfe_u32 v{VTMP+3}, v0, 5, 1
    v_lshl_or_b32 v{VTMP+2}, v{VTMP+3}, 1, v{VTMP+2}
    v_lshlrev_b32 v{VTMP+2}, 5, v{VTMP+2}
    v_xor_b32 v{VTMP+2}, s{S_T0}, v{VTMP+2}
    v_and_b32 v{VTMP+3}, 3, v0
    v_lshl_or_b32 v{VTMP+2}, v{VTMP+3}, 3, v{VTMP+2}
    v_add_u32 v{VTMP+5}, v{VTMP+5}, v{VTMP+2}
    v_add_u32 v{VTMP+5}, {L_WQ + 128*128}, v{VTMP+5}
    s_lshr_b32 s{S_T1}, s{S_I}, 3
    s_mul_i32 s{S_T1}, s{S_T1}, 288
    v_mul_u32_u24 v{VTMP+6}, 1152, v{VJ1}
    v_add3_u32 v{VTMP+6}, v{VTMP+6}, v{VG16}, s{S_T1}
    v_add_u32 v{VTMP+6}, {L_XN}, v{VTMP+6}
    v_lshrrev_b32 v{VTMP+7}, 1, v{VG16}
    v_sub_u32 v{VTMP+7}, v{VTMP+6}, v{VTMP+7}
    v_lshl_add_u32 v{A_PUB}, v{VJ1}, 16, v{VG16}
    s_lshl_b32 s{S_U0}, s{S_X}, 1
    s_lshr_b32 s{S_T1}, s{S_S}, 2
    s_add_u32 s{S_U0}, s{S_U0}, s{S_T1}
    s_lshl_b32 s{S_U0}, s{S_U0}, 2
    s_lshr_b32 s{S_T1}, s{S_I}, 3
    s_add_u32 s{S_U0}, s{S_U0}, s{S_T1}
    s_lshl_b32 s{S_U0}, s{S_U0}, 10
    s_and_b32 s{S_T1}, s{S_S}, 3
    s_lshl_b32 s{S_T1}, s{S_T1}, 8
    s_add_u32 s{S_U0}, s{S_U0}, s{S_T1}
    s_lshl_b32 s{S_T1}, s{S_WAVE}, 6
    s_add_u32 s{S_U0}, s{S_U0}, s{S_T1}
    s_add_u32 s{S_U0}, s{S_U0}, {WS_QP}
    """)
    poll_ge(L_PROG, BIAS + cfg._pwq, VTMP, sleep=0)
    a(f"ds_read_b64_tr_b16 {vr(VW+16,2)}, v{VTMP+5}")
    for ks in range(4):
        a(f"ds_read_b64_tr_b16 {vr(VW+ks*4,2)}, v{VTMP+4} offset:{ks*4096}")
        a(f"ds_read_b64_tr_b16 {vr(VW+ks*4+2,2)}, v{VTMP+4} offset:{ks*4096+512}")
    poll_ge(L_XNF, 1, VTMP, sleep=0)
    a(f"ds_read_b64 {vr(VB+16,2)}, v{VTMP+7} offset:256")
    for ks in range(4):
        a(f"ds_read_b128 {vr(VB+ks*4,4)}, v{VTMP+6} offset:{ks*64}")
    a(f"""
    s_waitcnt lgkmcnt(4)
    v_mfma_f32_16x16x16_bf16 {vr(VD+4,4)}, {vr(VW+16,2)}, {vr(VB+16,2)}, 0
    """)
    for ks in range(4):
        c = "0" if ks == 0 else vr(VD, 4)
        a(f"s_waitcnt lgkmcnt({3-ks})")
        a(f"v_mfma_f32_16x16x32_bf16 {vr(VD,4)}, {vr(VW+ks*4,4)}, {vr(VB+ks*4,4)}, {c}")
    a(f"""
    s_mov_b64 exec, {sr(S_M8,2)}
    s_nop 6
    """)
    for k in range(4):
        a(f"v_add_f32 v{VD+k}, v{VD+k}, v{VD+4+k}")
    tag4(VD)
    pub(VD, A_PUB, S_U0)
    a("s_mov_b64 exec, -1")
    stamp(1)
    a("L_NOQ:")
    a(f"""
    s_cmp_ge_u32 s{S_I}, 27
    s_cbranch_scc1 L_SETUPD
    s_cmp_ge_u32 s{S_I}, 18
    s_cbranch_scc1 L_SETUPW
    v_bfe_u32 v{R_F1}, v0, 2, 2
    v_lshrrev_b32 v{VTMP+2}, 1, v{VG16}
    v_add_u32 v{R_F1}, v{R_F1}, v{VTMP+2}
    v_lshlrev_b32 v{R_F1}, 6, v{R_F1}
    v_bfe_u32 v{VTMP+2}, v0, 4, 1
    v_lshlrev_b32 v{VTMP+2}, 5, v{VTMP+2}
    s_bfe_u32 s{S_T1}, s{S_WAVE}, 0x10001
    s_lshl_b32 s{S_T2}, s{S_T1}, 5
    v_xor_b32 v{VTMP+2}, s{S_T2}, v{VTMP+2}
    v_and_b32 v{VTMP+3}, 3, v0
    v_lshl_or_b32 v{VTMP+2}, v{VTMP+3}, 3, v{VTMP+2}
    s_and_b32 s{S_T2}, s{S_WAVE}, 1
    s_mul_i32 s{S_U0}, s{S_T2}, 36864
    s_lshr_b32 s{S_T3}, s{S_WAVE}, 2
    s_mul_i32 s{S_U1}, s{S_T3}, {288*64}
    s_add_u32 s{S_U0}, s{S_U0}, s{S_U1}
    s_add_u32 s{S_U0}, s{S_U0}, {L_WT}
    v_add3_u32 v{R_F1}, v{R_F1}, v{VTMP+2}, s{S_U0}
    v_mul_u32_u24 v{R_F2}, 1152, v{VJ1}
    v_add_u32 v{R_F2}, {L_XN}, v{R_F2}
    v_mov_b32 v{VTMP+2}, {L_ONES}
    v_and_b32 v{VTMP+3}, 2, v0
    v_cmp_ne_u32 vcc, 0, v{VTMP+3}
    s_mul_i32 s{S_U1}, s{S_T3}, 576
    s_lshl_b32 s{S_T2}, s{S_T2}, 1
    v_cndmask_b32 v{R_F2}, v{R_F2}, v{VTMP+2}, vcc
    v_add3_u32 v{R_F2}, v{R_F2}, v{VG16}, s{S_U1}
    s_add_u32 s{S_T2}, s{S_T2}, s{S_T3}
    s_mul_i32 s{S_T2}, s{S_T2}, 384
    s_lshl_b32 s{S_T1}, s{S_T1}, 6
    s_add_u32 s{S_T2}, s{S_T2}, s{S_T1}
    v_and_b32 v{VTMP+3}, 3, v0
    v_lshl_add_u32 v{R_F3}, v{VTMP+3}, 7, v{VG16}
    v_add_u32 v{R_F3}, s{S_T2}, v{R_F3}
    """)
    f2_pre()
    a("s_branch L_SETUPD")
    a("L_SETUPW:")
    a(f"""
    s_lshl_b32 s{S_T1}, s{S_WAVE}, 8
    s_add_u32 s{S_T1}, s{S_T1}, {L_O}
    """)
    cb_baddr(128, S_T1)
    a(f"""
    v_lshrrev_b32 v{R_HL}, 5, v0
    v_lshlrev_b32 v{R_HL}, 7, v{R_HL}
    v_and_b32 v{VTMP+1}, 15, v0
    v_lshl_add_u32 v{R_HL}, v{VTMP+1}, 3, v{R_HL}
    v_bfe_u32 v{VTMP+1}, v0, 4, 1
    v_lshl_add_u32 v{R_HL}, v{VTMP+1}, 2, v{R_HL}
    v_add_u32 v{R_HL}, s{S_T1}, v{R_HL}
    v_bfe_u32 v{R_XL}, v0, 1, 2
    v_lshl_add_u32 v{R_XL}, v{R_XL}, 6, v{VG16}
    v_lshl_add_u32 v{R_XL}, v{VJ1}, 8, v{R_XL}
    s_lshl_b32 s{S_T1}, s{S_WAVE}, 9
    s_add_u32 s{S_T1}, s{S_T1}, {L_ACCW}
    v_add_u32 v{R_XL}, s{S_T1}, v{R_XL}
    s_lshr_b32 s{S_T1}, s{S_WAVE}, 1
    s_lshl_b32 s{S_T1}, s{S_T1}, 6
    v_lshrrev_b32 v{R_XL+1}, 2, v{VG16}
    v_add_u32 v{R_XL+1}, s{S_T1}, v{R_XL+1}
    s_lshl_b32 s{S_T1}, s{S_WAVE}, 13
    s_add_u32 s{S_T1}, s{S_T1}, {L_WT}
    """)
    cb_aaddr(S_T1)
    gr_pre(S_CB)
    gr_zaddr(S_C2)
    a(f"""
    s_lshl_b32 s{S_PC+1}, s{S_X}, 3
    s_add_u32 s{S_PC+1}, s{S_PC+1}, s{S_WAVE}
    s_lshl_b32 s{S_PC+1}, s{S_PC+1}, 12
    s_add_u32 s{S_PC+1}, s{S_PC+1}, {WS_OP}
    s_add_u32 s{S_PC}, s{S_PC+1}, {WS_LOC}
    s_lshl_b32 s{S_C1}, s{S_WAVE}, 3
    s_add_u32 s{S_C1}, s{S_C1}, {BIAS + P_R0 + 8}
    """)
    if cfg.YTOUCH:
        a(f"""
        s_cmp_lg_u32 s{S_WAVE}, 0
        s_cbranch_scc1 L_SETUPD
        v_and_b32 v{VTMP+1}, 31, v0
        v_lshlrev_b32 v{VTMP+1}, 7, v{VTMP+1}
        s_lshl_b32 s{S_T0}, s{S_RI}, 12
        s_add_u32 s{S_T0}, s{S_T0}, {WS_YP}
        buffer_load_dword v{VD+8}, v{VTMP+1}, {sr(SRD_WS,4)}, s{S_T0} offen sc1
        """)
    a("L_SETUPD:")
    a(f"""
    v_and_b32 v{VTMP+1}, 15, v0
    v_lshlrev_b32 v{VTMP+2}, 8, v{VTMP+1}
    v_and_b32 v{VTMP+1}, 7, v0
    v_lshlrev_b32 v{VTMP+1}, 5, v{VTMP+1}
    v_xor_b32 v{VTMP+1}, v{VTMP+1}, v{VG16}
    s_lshl_b32 s{S_T1}, s{S_WAVE}, 13
    s_add_u32 s{S_T1}, s{S_T1}, {L_K}
    v_add_u32 v{VTMP+2}, s{S_T1}, v{VTMP+2}
    """)
    for t in range(4):
        a(f"v_xor_b32 v{VTMP+4+t}, {t*64}, v{VTMP+1}")
    for t in range(4):
        a(f"v_add_u32 v{VTMP+4+t}, v{VTMP+4+t}, v{VTMP+2}")
    a(f"""
    v_lshl_add_u32 v{A_QA}, v{VJ1}, 8, v{VG16}
    v_lshlrev_b32 v{A_H32}, 5, v{VJ1}
    s_lshl_b32 s{S_T1}, s{S_WAVE}, 2
    v_add_u32 v{A_HD}, s{S_T1}, v{A_H32}
    v_lshrrev_b32 v{A_PA}, 3, v{VG16}
    v_add_u32 v{A_PA}, v{A_PA}, v{VJ1}
    v_mul_u32_u24 v{A_PA}, 144, v{A_PA}
    s_lshl_b32 s{S_T1}, s{S_WAVE}, 4
    v_add_u32 v{A_PW}, s{S_T1}, v{A_PA}
    v_lshrrev_b32 v{VTMP+1}, 2, v0
    v_lshlrev_b32 v{A_VA}, 8, v{VTMP+1}
    v_and_b32 v{VTMP+1}, 7, v{VTMP+1}
    v_lshlrev_b32 v{VTMP+1}, 5, v{VTMP+1}
    s_lshl_b32 s{S_T1}, s{S_WAVE}, 5
    v_xor_b32 v{VTMP+1}, s{S_T1}, v{VTMP+1}
    v_and_b32 v{VTMP+3}, 3, v0
    v_lshl_or_b32 v{VTMP+1}, v{VTMP+3}, 3, v{VTMP+1}
    v_add_u32 v{A_VA}, v{A_VA}, v{VTMP+1}
    v_add_u32 v{A_VA}, {L_V}, v{A_VA}
    v_lshl_add_u32 v{A_PUB}, v{VJ1}, 13, v{VG16}
    s_lshl_b32 s{S_A0}, s{S_KVH}, 14
    s_lshr_b32 s{S_T1}, s{S_WAVE}, 2
    s_lshl_b32 s{S_T1}, s{S_T1}, 12
    s_add_u32 s{S_A0}, s{S_A0}, s{S_T1}
    s_and_b32 s{S_T1}, s{S_I}, 15
    s_lshl_b32 s{S_T1}, s{S_T1}, 8
    s_add_u32 s{S_A0}, s{S_A0}, s{S_T1}
    s_and_b32 s{S_T1}, s{S_WAVE}, 3
    s_lshl_b32 s{S_T1}, s{S_T1}, 6
    s_add_u32 s{S_A0}, s{S_A0}, s{S_T1}
    s_add_u32 s{S_A0}, s{S_A0}, {WS_OP + WS_LOC}
    s_lshl_b32 s{S_T1}, s{S_WAVE}, 6
    v_lshl_add_u32 v{A_OS}, v{VJ1}, 9, v{VG16}
    v_add_u32 v{A_OS}, s{S_T1}, v{A_OS}
    s_sub_u32 s{S_T1}, s{S_I}, 18
    s_cmp_lt_u32 s{S_T1}, {NW}
    s_cselect_b32 s{S_A1}, {NPFW}, {NPF}
    s_lshl_b32 s{S_T2}, s{S_WAVE}, 3
    s_add_u32 s{S_T2}, s{S_T2}, {BIAS + P_K0 + 8}
    """)
    poll_ge(L_PROG, f"s{S_T2}", VTMP, sleep=1)
    for T in range(2):
        for t in range(4):
            a(f"ds_read_b128 {vr(VW+(T*4+t)*4,4)}, v{VTMP+4+t} offset:{T*4096}")
    a(f"""
    s_mov_b32 s{S_T2}, 0x3db504f3
    s_mov_b32 s{S_T3}, 0x3fb8aa3b
    s_waitcnt vmcnt(0) lgkmcnt(0)
    s_mov_b64 exec, 1
    ds_add_u32 v{VZ}, v{VONE} offset:{L_KD}
    s_mov_b64 exec, -1
    """)
    stamp(2)
    poll_ge(L_QF, 1, VTMP, sleep=1)
    stamp(3)
    for t in range(4):
        a(f"ds_read_b128 {vr(VB+t*4,4)}, v{A_QA} offset:{L_Q+t*64}")
    for t in range(4):
        a(f"s_waitcnt lgkmcnt({3-t})")
        for T in range(2):
            c = "0" if t == 0 else vr(VD + T * 4, 4)
            a(f"v_mfma_f32_16x16x32_bf16 {vr(VD+T*4,4)}, {vr(VW+(T*4+t)*4,4)}, {vr(VB+t*4,4)}, {c}")
    a("s_nop 6")
    for k in range(0, 8, 2):
        a(f"""
        v_cvt_pk_bf16_f32 v{VTMP+4}, v{VD+k}, v{VD+k+1}
        v_lshlrev_b32 v{VD+k}, 16, v{VTMP+4}
        v_and_b32 v{VD+k+1}, 0xffff0000, v{VTMP+4}
        v_mul_f32 v{VD+k}, s{S_T2}, v{VD+k}
        v_mul_f32 v{VD+k+1}, s{S_T2}, v{VD+k+1}
        v_cvt_pk_bf16_f32 v{VTMP+4}, v{VD+k}, v{VD+k+1}
        v_lshlrev_b32 v{VD+k}, 16, v{VTMP+4}
        v_and_b32 v{VD+k+1}, 0xffff0000, v{VTMP+4}
        """)
    a(f"""
    v_max3_f32 v{VTMP+4}, v{VD}, v{VD+1}, v{VD+2}
    v_max3_f32 v{VTMP+4}, v{VTMP+4}, v{VD+3}, v{VD+4}
    v_max3_f32 v{VTMP+4}, v{VTMP+4}, v{VD+5}, v{VD+6}
    v_max_f32 v{VTMP+4}, v{VTMP+4}, v{VD+7}
    v_mov_b32 v{VTMP+5}, v{VTMP+4}
    s_nop 1
    v_permlane32_swap_b32 v{VTMP+4}, v{VTMP+5}
    v_max_f32 v{VTMP+4}, v{VTMP+4}, v{VTMP+5}
    v_mov_b32 v{VTMP+5}, v{VTMP+4}
    s_nop 1
    v_permlane16_swap_b32 v{VTMP+4}, v{VTMP+5}
    v_max_f32 v{VTMP+4}, v{VTMP+4}, v{VTMP+5}
    s_mov_b64 exec, 3
    ds_write_b32 v{A_HD}, v{VTMP+4} offset:{L_MXT}
    s_mov_b64 exec, -1
    s_mov_b32 s{S_CNT}, {cfg.TMO_L}
    """)
    a("L_MXP:")
    a(f"""
    ds_read_b128 {vr(VB,4)}, v{A_H32} offset:{L_MXT}
    ds_read_b128 {vr(VB+4,4)}, v{A_H32} offset:{L_MXT+16}
    s_sub_u32 s{S_CNT}, s{S_CNT}, 1
    s_cbranch_scc1 L_MXD
    s_waitcnt lgkmcnt(1)
    v_max3_f32 v{VTMP+4}, v{VB}, v{VB+1}, v{VB+2}
    s_waitcnt lgkmcnt(0)
    v_max3_f32 v{VTMP+5}, v{VB+3}, v{VB+4}, v{VB+5}
    v_max3_f32 v{VTMP+4}, v{VTMP+4}, v{VB+6}, v{VB+7}
    v_max_f32 v{VTMP+4}, v{VTMP+4}, v{VTMP+5}
    v_cmp_eq_u32 vcc, 0x7f800000, v{VTMP+4}
    s_cbranch_vccnz L_MXP
    """)
    a("L_MXD:")
    for k in range(8):
        a(f"v_sub_f32 v{VD+k}, v{VD+k}, v{VTMP+4}")
    for k in range(8):
        a(f"v_mul_f32 v{VD+k}, s{S_T3}, v{VD+k}")
    for k in range(8):
        a(f"v_exp_f32 v{VD+k}, v{VD+k}")
    a("s_nop 0")
    for k in range(4):
        a(f"v_cvt_pk_bf16_f32 v{VB+k}, v{VD+2*k}, v{VD+2*k+1}")
    a(f"""
    v_add_f32 v{VD}, v{VD}, v{VD+1}
    v_add_f32 v{VD+2}, v{VD+2}, v{VD+3}
    v_add_f32 v{VD+4}, v{VD+4}, v{VD+5}
    v_add_f32 v{VD+6}, v{VD+6}, v{VD+7}
    v_add_f32 v{VD}, v{VD}, v{VD+2}
    v_add_f32 v{VD+4}, v{VD+4}, v{VD+6}
    s_mov_b64 exec, {sr(S_M8,2)}
    ds_write_b128 v{A_PW}, {vr(VB,4)} offset:{L_P}
    s_mov_b64 exec, -1
    v_add_f32 v{VD}, v{VD}, v{VD+4}
    v_mov_b32 v{VD+1}, v{VD}
    s_nop 1
    v_permlane32_swap_b32 v{VD}, v{VD+1}
    v_add_f32 v{VD}, v{VD}, v{VD+1}
    v_mov_b32 v{VD+1}, v{VD}
    s_nop 1
    v_permlane16_swap_b32 v{VD}, v{VD+1}
    v_add_f32 v{VD}, v{VD}, v{VD+1}
    s_mov_b64 exec, 3
    ds_write_b32 v{A_HD}, v{VD} offset:{L_SMT}
    s_mov_b64 exec, 1
    ds_add_u32 v{VZ}, v{VONE} offset:{L_SUM+8}
    s_mov_b64 exec, -1
    """)
    poll_ge(L_SUM + 8, 8, VTMP, sleep=0)
    for u in range(8):
        a(f"ds_read_b128 {vr(VB+u*4,4)}, v{A_PA} offset:{L_P+u*16}")
    stamp(4)
    first = True
    for (u0, u1) in ((0, 4), (4, 6), (6, 7), (7, 8)):
        if 2 * u1 > cfg.PFPOS:
            a(f"s_add_u32 s{S_U1}, s{S_A1}, {BIAS + P_V0 + 8 * u1}")
            poll_ge(L_PROG, f"s{S_U1}", VTMP, sleep=(1 if u1 < 7 else 0))
        else:
            poll_ge(L_PROG, BIAS + P_V0 + 8 * u1, VTMP, sleep=1)
        for u in range(u0, u1):
            a(f"ds_read_b64_tr_b16 {vr(VW+u*4,2)}, v{A_VA} offset:{u*8192}")
            a(f"ds_read_b64_tr_b16 {vr(VW+u*4+2,2)}, v{A_VA} offset:{u*8192+4096}")
        for u in range(u0, u1):
            a(f"s_waitcnt lgkmcnt({2*(u1-1-u)})")
            c = "0" if first else vr(VD, 4)
            first = False
            a(f"v_mfma_f32_16x16x32_bf16 {vr(VD,4)}, {vr(VW+u*4,4)}, {vr(VB+u*4,4)}, {c}")
    a(f"""
    s_mov_b64 exec, {sr(S_M8,2)}
    s_nop 6
    """)
    tag4(VD)
    a(f"""
    buffer_store_dwordx4 {vr(VD,4)}, v{A_PUB}, {sr(SRD_WS,4)}, s{S_A0} offen
    ds_write_b128 v{A_OS}, {vr(VD,4)} offset:{L_OS}
    s_mov_b64 exec, 1
    ds_add_u32 v{VZ}, v{VONE} offset:{L_KD}
    s_mov_b64 exec, -1
    """)
    stamp(5)
    if cfg.STAMP == 3:
        a("s_waitcnt vmcnt(0)")
        stamp(0)
    a(f"""
    s_cmp_ge_u32 s{S_I}, 27
    s_cbranch_scc1 L_END
    s_cmp_lt_u32 s{S_I}, 18
    s_cbranch_scc1 L_COMPF
    """)
    poll_ge(L_WF, 1, VTMP, sleep=0)
    for k in range(4):
        a(f"ds_read_b32 v{R_WG+k}, v{R_XL+1} offset:{L_WGT+16*k}")
    q = VB + 16
    if cfg.OTRIG:
        poll_ge(L_PROG, BIAS + P_R0 + cfg.OTRIG, VTMP, sleep=0)
        for k in range(4):
            a(f"buffer_load_dwordx4 {vr(VB+4*k,4)}, v{R_L16}, {sr(SRD_WS,4)}, s{S_PC} offen offset:{1024*k} sc1")
    if not cfg.OFIRST:
        poll_ge(L_PROG, f"s{S_C1}", VTMP, sleep=0)
        cb_aread(2, 4096)
    else:
        poll_ge(L_PROG, BIAS + P_R0 + cfg.OFIRST, VTMP, sleep=0)
    stamp(6)
    if cfg.MG or cfg.MGO:
        for d in range(8):
            a(f"v_mov_b32 v{q+d}, 0")

    def o_valid(k, inorder):
        for d in range(4):
            op = "v_mul_f32" if inorder and k % 2 == 0 else "v_fmac_f32"
            a(f"{op} v{q+4*(k>>1)+d}, v{VB+4*k+d}, v{R_WG+k}")

    mgather(4, VB, R_L16, S_PC, o_valid, toggle=(S_PC, S_PC + 1), pre_issued=bool(cfg.OTRIG), extra=0, masked=bool(cfg.MG or cfg.MGO))
    stamp(8)
    for d in range(4):
        a(f"v_permlane32_swap_b32 v{q+d}, v{q+4+d}")
    a(f"""
    v_pk_add_f32 {vr(q,2)}, {vr(q,2)}, {vr(q+4,2)}
    v_pk_add_f32 {vr(q+2,2)}, {vr(q+2,2)}, {vr(q+6,2)}
    s_nop 1
    v_permlane16_swap_b32 v{q}, v{q+2}
    v_permlane16_swap_b32 v{q+1}, v{q+3}
    v_pk_add_f32 {vr(q,2)}, {vr(q,2)}, {vr(q+2,2)}
    v_cvt_pk_bf16_f32 v{q}, v{q}, v{q+1}
    ds_write_b32 v{R_HL}, v{q}
    """)
    if cfg.OFIRST:
        poll_ge(L_PROG, f"s{S_C1}", VTMP, sleep=0)
        cb_aread(2, 4096)
    cb_bread(2)
    cb_mfma(2)
    a(f"""
    ds_write_b128 v{R_XL}, {vr(VD,4)}
    s_mov_b64 exec, -1
    s_waitcnt lgkmcnt(0)
    """)
    stamp(7)
    a(f"""
    s_barrier
    s_cmp_lg_u32 s{S_WAVE}, 0
    s_cbranch_scc1 L_NORELAY
    """)
    h_pre(S_RI)
    a(f"""
    s_lshl_b32 s{S_U3}, s{S_X}, 13
    s_lshl_b32 s{S_T0}, s{S_RI}, 9
    s_add_u32 s{S_U3}, s{S_U3}, s{S_T0}
    s_add_u32 s{S_U3}, s{S_U3}, {WS_HB}
    """)
    x_unpack()
    if cfg.RPIPE:
        def r_ok(b):
            a(f"""
            v_pk_add_f32 {vr(HGQ,2)}, {vr(b,2)}, {vr(b+4,2)}
            v_pk_add_f32 {vr(HGQ+2,2)}, {vr(b+2,2)}, {vr(b+6,2)}
            v_pk_add_f32 {vr(HGQ,2)}, {vr(HGQ,2)}, {vr(b+8,2)}
            v_pk_add_f32 {vr(HGQ+2,2)}, {vr(HGQ+2,2)}, {vr(b+10,2)}
            v_pk_add_f32 {vr(HGQ,2)}, {vr(HGQ,2)}, {vr(b+12,2)}
            v_pk_add_f32 {vr(HGQ+2,2)}, {vr(HGQ+2,2)}, {vr(b+14,2)}
            """)
        pgather(4, [VW, VW + 16, VW + 32][:cfg.RPIPE], R_L16, S_U2, r_ok)
        h_finish()
    else:
        h_get(sleep=cfg.RSLEEP)
    stamp(0)
    a("L_NORELAY:")
    a(f"""
    s_cmp_ge_u32 s{S_R}, 36
    s_cbranch_scc1 L_END
    """)
    poll_ge(L_WF, 2, VTMP, sleep=2)
    gather_reduce(2, R_L16, S_C2, L_ACCR)
    stamp(9)
    a("s_barrier")
    endpgm()

    a("L_COMPF:")
    if cfg.HYB:
        h_pre(S_CB, S_C2)
    for k in range(36):
        a(f"v_mov_b32 v{VB+k}, 0x3f803f80")
    a(f"""
    s_xor_b32 s{S_T1}, s{S_WAVE}, s{S_I}
    s_and_b32 s{S_T1}, s{S_T1}, 1
    s_mul_i32 s{S_T1}, s{S_T1}, {72 if cfg.W2MID else 36}
    s_add_u32 s{S_U0}, s{S_T1}, {BIAS + P_R0 + NPF}
    s_cmp_ge_u32 s{S_WAVE}, 4
    s_cselect_b32 s{S_T1}, 24, 8
    s_cselect_b32 s{S_T2}, 32, 12
    s_cselect_b32 s{S_T0}, 36, 20
    s_add_u32 s{S_U1}, s{S_U0}, s{S_T1}
    s_add_u32 s{S_U2}, s{S_U0}, s{S_T2}
    s_add_u32 s{S_U3}, s{S_U0}, s{S_T0}
    s_mov_b32 s{S_V0}, 0
    s_mov_b32 s{S_CNT}, {cfg.TMO_L}
    """)
    a("L_FW:")
    a(f"""
    ds_read_b64 {vr(VTMP,2)}, v{VZ} offset:{L_PROG}
    s_sub_u32 s{S_CNT}, s{S_CNT}, 1
    s_cbranch_scc1 L_FW2
    s_waitcnt lgkmcnt(0)
    v_readfirstlane_b32 s{S_T1}, v{VTMP+1}
    v_readfirstlane_b32 s{S_T0}, v{VTMP}
    s_cmp_ge_u32 s{S_T1}, 10
    s_cbranch_scc1 L_FW2
    s_cmp_lt_u32 s{S_T0}, s{S_U3}
    s_cbranch_scc1 L_FW
    """)
    f_frags(0, 9)
    a(f"s_mov_b32 s{S_V0}, 1")
    stamp(6)
    a("L_FW3:")
    a(f"""
    ds_read_b64 {vr(VTMP,2)}, v{VZ} offset:{L_PROG}
    s_sub_u32 s{S_CNT}, s{S_CNT}, 1
    s_cbranch_scc1 L_FW2
    s_waitcnt lgkmcnt(0)
    v_readfirstlane_b32 s{S_T1}, v{VTMP+1}
    v_readfirstlane_b32 s{S_T0}, v{VTMP}
    s_cmp_ge_u32 s{S_T1}, 10
    s_cbranch_scc1 L_FW2
    s_cmp_lt_u32 s{S_T0}, {BIAS + P_R0 + NPF + 108}
    s_cbranch_scc1 L_FW3
    """)
    cb_aread(1, 0)
    a(f"s_mov_b32 s{S_V0}, 3")
    poll_ge(L_XNF, 10, VTMP, sleep=0)
    a("L_FW2:")
    stamp(8)
    if cfg.STAMP == 5:
        stamp(0)
    a(f"s_mov_b64 exec, {sr(S_M8,2)}")
    for ks in range(9):
        a(f"ds_read_b128 {vr(VB+ks*4,4)}, v{R_F2} offset:{ks*64}")
    a(f"""
    s_mov_b64 exec, -1
    s_cmp_eq_u32 s{S_V0}, 0
    s_cbranch_scc1 L_FST
    """)
    for ks in range(9):
        a(f"s_waitcnt lgkmcnt({8-ks})")
        c = "0" if ks == 0 else vr(VD, 4)
        a(f"v_mfma_f32_16x16x32_bf16 {vr(VD,4)}, {vr(VW+16+ks*4,4)}, {vr(VB+ks*4,4)}, {c}")
    a("s_branch L_F1E")
    a("L_FST:")
    for st, thr in enumerate((S_U1, S_U2, S_U3)):
        poll_ge(L_PROG, f"s{thr}", VTMP, sleep=0)
        f_frags(3 * st, 3 * st + 3)
        for k in range(3):
            ks = 3 * st + k
            a(f"s_waitcnt lgkmcnt({2*(2-k)})")
            c = "0" if ks == 0 else vr(VD, 4)
            a(f"v_mfma_f32_16x16x32_bf16 {vr(VD,4)}, {vr(VW+16+ks*4,4)}, {vr(VB+ks*4,4)}, {c}")
    stamp(6)
    a("L_F1E:")
    a(f"""
    s_mov_b32 exec_lo, 0x00070007
    s_mov_b32 exec_hi, 0x00070007
    s_nop 5
    ds_write_b128 v{R_F3}, {vr(VD,4)} offset:{L_GU}
    s_mov_b64 exec, -1
    """)
    a(f"""
    s_cmp_eq_u32 s{S_V0}, 3
    s_waitcnt lgkmcnt(0)
    s_cbranch_scc1 L_F2B
    """)
    poll_ge(L_PROG, BIAS + P_R0 + NPF + 108, VTMP, sleep=0)
    a("L_F2:")
    cb_aread(1, 0)
    a("L_F2B:")
    if cfg.STAMP == 5:
        stamp(1)
    a("s_barrier")
    if cfg.STAMP == 5:
        stamp(2)
    G = VD + 4
    a(f"""
    ds_read_b32 v{G}, v{R_G0} offset:{L_GU}
    ds_read_b32 v{G+2}, v{R_G0} offset:{L_GU+384}
    ds_read_b32 v{G+1}, v{R_G0} offset:{L_GU+768}
    ds_read_b32 v{G+3}, v{R_G0} offset:{L_GU+1152}
    ds_read_b32 v{G+4}, v{R_G1} offset:{L_GU+256}
    ds_read_b32 v{G+6}, v{R_G1} offset:{L_GU+384+256}
    ds_read_b32 v{G+5}, v{R_G1} offset:{L_GU+768+256}
    ds_read_b32 v{G+7}, v{R_G1} offset:{L_GU+1152+256}
    ds_read_b64 {vr(G+8,2)}, v{R_LS} offset:{L_LNS}
    s_waitcnt lgkmcnt(5)
    v_pk_add_f32 {vr(G,2)}, {vr(G,2)}, {vr(G+2,2)}
    s_waitcnt lgkmcnt(1)
    v_pk_add_f32 {vr(G+4,2)}, {vr(G+4,2)}, {vr(G+6,2)}
    s_waitcnt lgkmcnt(0)
    """)
    a(f"""
    v_fmac_f32 v{G}, v{G+4}, v{G+8}
    v_fmac_f32 v{G+1}, v{G+5}, v{G+8}
    v_mul_f32 v{G}, v{G}, v{G+9}
    v_mul_f32 v{G+1}, v{G+1}, v{G+9}
    v_cvt_pk_bf16_f32 v{G}, v{G}, v{G+1}
    v_lshlrev_b32 v{G+2}, 16, v{G}
    v_and_b32 v{G+4}, 0xffff0000, v{G}
    v_mul_f32 v{G+1}, 0xbfb8aa3b, v{G+2}
    v_exp_f32 v{G+1}, v{G+1}
    s_nop 0
    v_add_f32 v{G+1}, 1.0, v{G+1}
    v_rcp_f32 v{G+1}, v{G+1}
    s_nop 0
    v_mul_f32 v{G+1}, v{G+2}, v{G+1}
    """)
    bf16r(G + 1, G + 1)
    a(f"""
    v_mul_f32 v{G+1}, v{G+1}, v{G+4}
    v_cvt_pk_bf16_f32 v{G+1}, v{G+1}, v{G+1}
    ds_write_b16 v{R_HW}, v{G+1}
    """)
    if cfg.STAMP == 5:
        stamp(3)
    cb_bread(1)
    cb_mfma(1)
    tag4(VD)
    a(f"""
    buffer_store_dwordx4 {vr(VD,4)}, v{R_ST}, {sr(SRD_WS,4)}, s{S_C1} offen sc1
    s_mov_b64 exec, -1
    """)
    stamp(7)
    endpgm()

    C = VA
    a("L_COMM:")
    a("s_setprio 2")
    a(f"""
    v_lshrrev_b32 v{C+2}, 5, v0
    v_mul_u32_u24 v{C+2}, 1152, v{C+2}
    v_and_b32 v{C+3}, 31, v0
    v_lshl_add_u32 v{C+2}, v{C+3}, 2, v{C+2}
    s_lshr_b32 s{S_U3}, s{S_I}, 3
    s_mul_i32 s{S_U3}, s{S_U3}, 288
    v_lshlrev_b32 v{C}, 2, v0
    v_mov_b32 v{C+1}, 0x7f800000
    v_mov_b32 v{C+3}, 0x3f803f80
    s_waitcnt lgkmcnt(0)
    """)
    srd(SRD_A, KA_X, 2304)

    def xloads():
        for k in range(9):
            a(f"buffer_load_dword v{VB+k}, v{C+2}, {sr(SRD_A,4)}, 0 offen offset:{128*k}")
        for k in range(3):
            a(f"buffer_load_dword v{VB+9+k}, v{C+2}, {sr(SRD_A,4)}, s{S_U3} offen offset:{128*k}")

    if cfg.XS:
        pass
    else:
        xloads()
    a(f"""
    ds_write_b32 v{C}, v{VZ}
    ds_write_b32 v{C}, v{VZ} offset:256
    s_mov_b64 exec, 0xffff
    ds_write_b32 v{C}, v{C+1} offset:{L_MXT}
    s_mov_b64 exec, -1
    """)
    srd(SRD_WS, KA_WS, WS_SIZE)
    a(f"""
    """)
    a(f"""
    s_waitcnt lgkmcnt(0)
    """)
    if cfg.XS:
        for k in range(18):
            a(f"s_load_dword s77, {sr(KA_X,2)}, {128*k}")
    a(f"""
    s_barrier
    s_load_dword s{S_EP}, {sr(KA_WS,2)}, {WS_EPOCH}
    """)
    if cfg.XS:
        a("s_waitcnt lgkmcnt(0)")
        xloads()
    for k in range(5):
        a(f"ds_write_b32 v{C}, v{C+3} offset:{L_ONES+256*k}")
    role_idx()
    VXS = VD + 12
    a(f"""
    s_lshl_b32 s{S_U0}, s{S_R}, 6
    s_min_u32 s{S_U0}, s{S_U0}, 0x10000
    v_lshlrev_b32 v{C+4}, 1, v0
    buffer_load_ushort v{VXS}, v{C+4}, {sr(SRD_A,4)}, s{S_U0} offen
    v_add_u32 v{C+5}, s{S_U3}, v{C+2}
    """)
    lane_setup()
    a("s_waitcnt vmcnt(4)")
    vs, vq, vt = VTMP, VTMP + 1, VTMP + 2
    for k in range(9):
        a(f"""
        v_lshlrev_b32 v{VW+2*k}, 16, v{VB+k}
        v_and_b32 v{VW+2*k+1}, 0xffff0000, v{VB+k}
        """)
    a(f"v_pk_add_f32 {vr(VTMP+4,2)}, {vr(VW,2)}, {vr(VW+2,2)}")
    for k in range(2, 9):
        a(f"v_pk_add_f32 {vr(VTMP+4,2)}, {vr(VTMP+4,2)}, {vr(VW+2*k,2)}")
    a(f"v_add_f32 v{vs}, v{VTMP+4}, v{VTMP+5}")
    half_reduce(vs, vt)
    a(f"v_mul_f32 v{vs}, {hex(f2u(1.0/576))}, v{vs}")
    for k in range(18):
        a(f"v_sub_f32 v{VW+k}, v{VW+k}, v{vs}")
    a(f"v_pk_mul_f32 {vr(VTMP+4,2)}, {vr(VW,2)}, {vr(VW,2)}")
    for k in range(1, 9):
        a(f"v_pk_fma_f32 {vr(VTMP+4,2)}, {vr(VW+2*k,2)}, {vr(VW+2*k,2)}, {vr(VTMP+4,2)}")
    a(f"v_add_f32 v{vq}, v{VTMP+4}, v{VTMP+5}")
    half_reduce(vq, vt)
    a(f"v_mul_f32 v{vq}, {hex(f2u(1.0/576))}, v{vq}")
    ln_tail(vs, vq, vt)
    a("s_waitcnt vmcnt(1)")
    for k in range(3):
        x0, x1, p = VW + 2 * k, VW + 2 * k + 1, VB + 9 + k
        a(f"""
        v_lshlrev_b32 v{x0}, 16, v{p}
        v_and_b32 v{x1}, 0xffff0000, v{p}
        v_add_f32 v{x0}, v{x0}, v{vs}
        v_add_f32 v{x1}, v{x1}, v{vs}
        v_cvt_pk_bf16_f32 v{p}, v{x0}, v{x1}
        v_lshlrev_b32 v{x0}, 16, v{p}
        v_and_b32 v{x1}, 0xffff0000, v{p}
        v_mul_f32 v{x0}, v{x0}, v{vq}
        v_mul_f32 v{x1}, v{x1}, v{vq}
        v_cvt_pk_bf16_f32 v{p}, v{x0}, v{x1}
        """)
    a(f"""
    ds_write_b32 v{C+5}, v{VB+9} offset:{L_XN}
    ds_write_b32 v{C+5}, v{VB+10} offset:{L_XN+128}
    s_mov_b32 exec_lo, 0xff
    s_mov_b32 exec_hi, 0xff
    ds_write_b32 v{C+5}, v{VB+11} offset:{L_XN+256}
    s_mov_b64 exec, -1
    ds_write_b32 v{VZ}, v{VONE} offset:{L_XNF}
    s_waitcnt vmcnt(0) lgkmcnt(0)
    """)
    tags_setup()
    stamp(0)
    if cfg.MOVEC:
        a("s_branch L_COMM2")
        a("; MOVE_END")
        a("L_COMM2:")
    if cfg.DIAG:
        a(f"""
        v_mov_b32 v{VB+20}, s76
        s_lshl_b32 s{S_T0}, s{S_WG}, 2
        s_add_u32 s{S_T0}, s{S_T0}, {WS_DBG}
        s_mov_b64 exec, 1
        buffer_store_dword v{VB+20}, v{VZ}, {sr(SRD_WS,4)}, s{S_T0} offen sc1
        s_mov_b64 exec, -1
        """)
    a(f"""
    v_lshlrev_b32 v{VXS}, 16, v{VXS}
    s_lshl_b32 s{S_U0}, s{S_B}, 4
    s_add_u32 s{S_U0}, s{S_U0}, s{S_KVH}
    s_lshl_b32 s{S_U0}, s{S_U0}, 12
    s_add_u32 s{S_U0}, s{S_U0}, {WS_QP}
    s_add_u32 s{S_U1}, s{S_U0}, {WS_LOC}
    v_lshlrev_b32 v{C+6}, 3, v0
    """)
    poll_ge(L_PROG, BIAS + P_K0 + cfg.QTRIG, VTMP, sleep=2)
    a(f"s_mov_b32 s{S_CNT}, {cfg.TMO_G}")
    a("L_QG:")
    for k in range(4):
        a(f"buffer_load_dwordx4 {vr(VW+4*k,4)}, v{R_L16}, {sr(SRD_WS,4)}, s{S_U1} offen offset:{1024*k} sc1")
    for k in range(4):
        a(f"s_waitcnt vmcnt({3-k})")
        chk4(VTMP + 1, VW + 4 * k, k == 0)
    chk_end(VTMP + 1, "L_QG", "L_QGD", toggle=(S_U1, S_U0), tmask=3)
    for d in range(0, 4, 2):
        a(f"""
        v_pk_add_f32 {vr(VB+d,2)}, {vr(VW+d,2)}, {vr(VW+4+d,2)}
        v_pk_add_f32 {vr(VB+4+d,2)}, {vr(VW+8+d,2)}, {vr(VW+12+d,2)}
        v_pk_add_f32 {vr(VB+d,2)}, {vr(VB+d,2)}, {vr(VB+4+d,2)}
        """)
    a(f"""
    v_cvt_pk_bf16_f32 v{VB}, v{VB}, v{VB+1}
    v_cvt_pk_bf16_f32 v{VB+1}, v{VB+2}, v{VB+3}
    ds_write_b64 v{C+6}, {vr(VB,2)} offset:{L_Q}
    ds_write_b32 v{VZ}, v{VONE} offset:{L_QF}
    """)
    stamp(1)
    a(f"""
    v_lshlrev_b32 v{C+5}, 5, v{VJ1}
    v_lshlrev_b32 v{C+6}, 8, v{VJ1}
    s_lshl_b32 s{S_U0}, s{S_KVH}, 9
    s_and_b32 s{S_T1}, s{S_I}, 15
    s_lshl_b32 s{S_T1}, s{S_T1}, 4
    s_add_u32 s{S_U0}, s{S_U0}, s{S_T1}
    s_add_u32 s{S_U0}, s{S_U0}, {WS_ST}
    v_lshrrev_b32 v{C+7}, 5, v0
    v_lshlrev_b32 v{C+7}, 13, v{C+7}
    v_bfe_u32 v{C+4}, v0, 4, 1
    v_lshl_add_u32 v{C+7}, v{C+4}, 12, v{C+7}
    v_and_b32 v{C+4}, 15, v0
    v_lshl_add_u32 v{C+7}, v{C+4}, 4, v{C+7}
    s_lshl_b32 s{S_A0}, s{S_KVH}, 14
    s_and_b32 s{S_T1}, s{S_I}, 15
    s_lshl_b32 s{S_T1}, s{S_T1}, 8
    s_add_u32 s{S_A0}, s{S_A0}, s{S_T1}
    s_add_u32 s{S_A0}, s{S_A0}, {WS_OP}
    """)
    poll_ge(L_SUM + 8, 8, VTMP, sleep=1)
    a(f"""
    ds_read_b128 {vr(VW,4)}, v{C+5} offset:{L_MXT}
    ds_read_b128 {vr(VW+4,4)}, v{C+5} offset:{L_MXT+16}
    ds_read_b128 {vr(VW+8,4)}, v{C+5} offset:{L_SMT}
    ds_read_b128 {vr(VW+12,4)}, v{C+5} offset:{L_SMT+16}
    s_waitcnt lgkmcnt(0)
    v_max3_f32 v{VB}, v{VW}, v{VW+1}, v{VW+2}
    v_max3_f32 v{VB}, v{VB}, v{VW+3}, v{VW+4}
    v_max3_f32 v{VB}, v{VB}, v{VW+5}, v{VW+6}
    v_max_f32 v{VB}, v{VB}, v{VW+7}
    v_pk_add_f32 {vr(VW+8,2)}, {vr(VW+8,2)}, {vr(VW+10,2)}
    v_pk_add_f32 {vr(VW+12,2)}, {vr(VW+12,2)}, {vr(VW+14,2)}
    v_pk_add_f32 {vr(VW+8,2)}, {vr(VW+8,2)}, {vr(VW+12,2)}
    v_add_f32 v{VB+1}, v{VW+8}, v{VW+9}
    v_mov_b32 v{VB+2}, v{VB}
    v_mov_b32 v{VB+3}, v{VB+1}
    """)
    tag4(VB)
    a("s_mov_b64 exec, 3")
    pub(VB, C + 6, S_U0)
    a("s_mov_b64 exec, -1")
    stamp(2)

    def ocopy():
        poll_ge(L_KD, 16, VTMP, sleep=2)
        a(f"""
        ds_read_b128 {vr(VB+4,4)}, v{R_L16} offset:{L_OS}
        s_waitcnt lgkmcnt(0)
        buffer_store_dwordx4 {vr(VB+4,4)}, v{C+7}, {sr(SRD_WS,4)}, s{S_A0} offen sc1
        """)

    a(f"""
    s_sub_u32 s{S_T1}, s{S_I}, 18
    s_cmp_lt_u32 s{S_T1}, {NW}
    s_cbranch_scc1 L_COMMW
    """)
    ocopy()
    a(f"""
    s_cmp_ge_u32 s{S_I}, 27
    s_cbranch_scc1 L_END
    """)
    a(f"""
    s_mov_b32 s{S_U2}, 0x3f803f80
    v_bfe_u32 v{R_LS}, v0, 4, 1
    v_mul_u32_u24 v{C+2}, 1152, v{R_LS}
    v_lshlrev_b32 v{R_LS}, 3, v{R_LS}
    v_lshrrev_b32 v{C+3}, 5, v0
    v_lshl_add_u32 v{C+2}, v{C+3}, 7, v{C+2}
    v_and_b32 v{C+3}, 15, v0
    v_lshl_add_u32 v{C+2}, v{C+3}, 3, v{C+2}
    v_mov_b32 v{C+6}, 16
    s_lshl_b32 s{S_U1}, s{S_X}, 13
    s_add_u32 s{S_U1}, s{S_U1}, {WS_HB}
    s_add_u32 s{S_U0}, s{S_U1}, {WS_LOC}
    v_mov_b32 v{VW+16}, 0
    v_mov_b32 v{VW+17}, 0
    v_mov_b32 v{VW+18}, s{S_TAGF}
    v_mov_b32 v{VW+19}, s{S_TAGF}
    v_add_u32 v{C+3}, 4096, v{R_L16}
    """)
    poll_ge(L_PROG, BIAS + P_R0 + NPF + cfg.HTRIG, VTMP, sleep=4)
    a(f"s_mov_b32 s{S_CNT}, {cfg.TMO_G}")
    def hissue(b):
        for k in range(4):
            a(f"buffer_load_dwordx4 {vr(b+4*k,4)}, v{R_L16}, {sr(SRD_WS,4)}, s{S_U0} offen offset:{1024*k} sc1")
        a(f"""
        s_mov_b32 exec_hi, 0
        buffer_load_dwordx4 {vr(b+16,4)}, v{C+3}, {sr(SRD_WS,4)}, s{S_U0} offen sc1
        s_mov_b64 exec, -1
        """)

    def hcheck(b, extra, ok):
        for k in range(5):
            a(f"s_waitcnt vmcnt({extra+4-k})")
            if k == 4:
                a("s_mov_b32 exec_hi, 0")
            a(f"ds_write_b64 v{C+2}, {vr(b+4*k,2)} offset:{L_XN+256*k}")
            if k == 4:
                a("s_mov_b64 exec, -1")
            if k == 0:
                a(f"v_xor_b32 v{VTMP+3}, s{S_TAGF}, v{b+2}")
            else:
                a(f"v_bitop3_b32 v{VTMP+3}, v{VTMP+3}, v{b+4*k+2}, s{S_TAGF} bitop3:0xf6")
            a(f"v_bitop3_b32 v{VTMP+3}, v{VTMP+3}, v{b+4*k+3}, s{S_TAGF} bitop3:0xf6")
        a(f"""
        v_cmp_ne_u32 vcc, 0, v{VTMP+3}
        s_cbranch_vccz {ok}
        """)

    sets = [VW, VW + 20] if cfg.HPIPE else [VW]
    if cfg.HPIPE:
        a(f"""
        v_mov_b32 v{VW+36}, 0
        v_mov_b32 v{VW+37}, 0
        v_mov_b32 v{VW+38}, s{S_TAGF}
        v_mov_b32 v{VW+39}, s{S_TAGF}
        """)
        hissue(VW)
        a("s_sleep 2")
        a("L_HG:")
        hissue(VW + 20)
        hcheck(VW, 5, "L_HOK0")
        hissue(VW)
        hcheck(VW + 20, 5, "L_HOK1")
    else:
        a("L_HG:")
        hissue(VW)
        hcheck(VW, 0, "L_HOK0")
    a(f"""
    s_sub_u32 s{S_CNT}, s{S_CNT}, 1
    s_cbranch_scc1 L_HTO
    s_and_b32 s{S_T0}, s{S_CNT}, {cfg.GMASK}
    s_cmp_eq_u32 s{S_T0}, 0
    s_cselect_b32 s{S_U0}, 0, {WS_LOC}
    s_add_u32 s{S_U0}, s{S_U0}, s{S_U1}
    s_branch L_HG
    """)
    a("L_HTO:")
    a("s_waitcnt vmcnt(0)")
    for j, b in enumerate(sets):
        a(f"L_HOK{j}:")
        a(f"ds_write_b32 v{VZ}, v{C+6} offset:{L_XNF}")
        stamp(3)
        first = True
        for k in range(5):
            for d in range(2):
                c0 = "0" if first else f"v{vs}"
                c1 = "0" if first else f"v{vq}"
                first = False
                a(f"v_dot2_f32_bf16 v{vs}, v{b+4*k+d}, s{S_U2}, {c0}")
                a(f"v_dot2_f32_bf16 v{vq}, v{b+4*k+d}, v{b+4*k+d}, {c1}")
        if j < len(sets) - 1:
            a("s_branch L_HST")
    a("L_HST:")
    a(f"""
    s_nop 2
    v_add_f32_dpp v{vs}, v{vs}, v{vs} quad_perm:[1,0,3,2] {DPPM}
    v_add_f32_dpp v{vq}, v{vq}, v{vq} quad_perm:[1,0,3,2] {DPPM}
    s_nop 0
    v_add_f32_dpp v{vs}, v{vs}, v{vs} quad_perm:[2,3,0,1] {DPPM}
    v_add_f32_dpp v{vq}, v{vq}, v{vq} quad_perm:[2,3,0,1] {DPPM}
    s_nop 0
    v_add_f32_dpp v{vs}, v{vs}, v{vs} row_half_mirror {DPPM}
    v_add_f32_dpp v{vq}, v{vq}, v{vq} row_half_mirror {DPPM}
    s_nop 0
    v_add_f32_dpp v{vs}, v{vs}, v{vs} row_mirror {DPPM}
    v_add_f32_dpp v{vq}, v{vq}, v{vq} row_mirror {DPPM}
    v_mov_b32 v{vt}, v{vs}
    v_mov_b32 v{vt+1}, v{vq}
    s_nop 0
    v_permlane32_swap_b32 v{vs}, v{vt}
    v_permlane32_swap_b32 v{vq}, v{vt+1}
    v_add_f32 v{vs}, v{vs}, v{vt}
    v_add_f32 v{vq}, v{vq}, v{vt+1}
    v_mul_f32 v{vs}, {hex(f2u(1.0/576))}, v{vs}
    v_mul_f32 v{vq}, {hex(f2u(1.0/576))}, v{vq}
    v_fma_f32 v{vq}, -v{vs}, v{vs}, v{vq}
    v_max_f32 v{vq}, 0, v{vq}
    """)
    ln_tail(vs, vq, vt)
    a(f"""
    s_nop 0
    ds_write_b64 v{R_LS}, {vr(vs,2)} offset:{L_LNS}
    s_waitcnt lgkmcnt(0)
    """)
    stamp(4)
    a("s_barrier")
    endpgm()

    a("L_COMMW:")
    a(f"""
    s_lshl_b32 s{S_U1}, s{S_X}, 10
    s_add_u32 s{S_U1}, s{S_U1}, {WS_ST}
    s_add_u32 s{S_U0}, s{S_U1}, {WS_LOC}
    s_mov_b32 s{S_T2}, 0x3fb8aa3b
    v_lshlrev_b32 v{C}, 2, v0
    """)
    poll_ge(L_PROG, BIAS + P_V0 + (NPFW if cfg.STRIG > 4 * cfg.PFPOS else 0) + cfg.STRIG, VTMP, sleep=2)
    a(f"s_mov_b32 s{S_CNT}, {cfg.TMO_G}")
    a("L_SG:")
    a(f"""
    buffer_load_dwordx4 {vr(VB+8,4)}, v{R_L16}, {sr(SRD_WS,4)}, s{S_U0} offen sc1
    s_waitcnt vmcnt(0)
    """)
    chk4(VTMP + 1, VB + 8, True)
    chk_end(VTMP + 1, "L_SG", "L_SGD", toggle=(S_U0, S_U1))
    m, l, M, Ls = VB + 8, VB + 9, VB + 12, VB + 13
    a(f"""
    v_max_f32_dpp v{M}, v{m}, v{m} quad_perm:[1,0,3,2] {DPPM}
    s_nop 1
    v_max_f32_dpp v{M}, v{M}, v{M} quad_perm:[2,3,0,1] {DPPM}
    s_nop 1
    v_max_f32_dpp v{M}, v{M}, v{M} row_half_mirror {DPPM}
    v_sub_f32 v{m}, v{m}, v{M}
    v_mul_f32 v{m}, s{S_T2}, v{m}
    v_exp_f32 v{m}, v{m}
    s_nop 0
    v_mul_f32 v{Ls}, v{m}, v{l}
    s_nop 1
    v_add_f32_dpp v{Ls}, v{Ls}, v{Ls} quad_perm:[1,0,3,2] {DPPM}
    s_nop 1
    v_add_f32_dpp v{Ls}, v{Ls}, v{Ls} quad_perm:[2,3,0,1] {DPPM}
    s_nop 1
    v_add_f32_dpp v{Ls}, v{Ls}, v{Ls} row_half_mirror {DPPM}
    v_rcp_f32 v{Ls}, v{Ls}
    s_nop 0
    v_mul_f32 v{m}, v{m}, v{Ls}
    ds_write_b32 v{C}, v{m} offset:{L_WGT}
    ds_write_b32 v{VZ}, v{VONE} offset:{L_WF}
    """)
    stamp(3)
    ocopy()
    a(f"""
    s_lshl_b32 s{S_U2}, s{S_RI}, 12
    s_lshl_b32 s{S_T0}, s{S_X}, 9
    s_add_u32 s{S_U2}, s{S_U2}, s{S_T0}
    s_add_u32 s{S_U2}, s{S_U2}, {WS_YP}
    s_cmp_ge_u32 s{S_R}, 18
    s_cselect_b32 s{S_T0}, 18, 0
    s_cselect_b32 s{S_T1}, 256, 0
    s_sub_u32 s{S_T0}, s{S_R}, s{S_T0}
    s_lshr_b32 s{S_T2}, s{S_T0}, 1
    s_lshl_b32 s{S_T2}, s{S_T2}, 12
    s_and_b32 s{S_T0}, s{S_T0}, 1
    s_lshl_b32 s{S_T0}, s{S_T0}, 7
    s_add_u32 s{S_U0}, s{S_T0}, s{S_T1}
    s_add_u32 s{S_U0}, s{S_U0}, s{S_T2}
    s_add_u32 s{S_U0}, s{S_U0}, {WS_YP}
    v_lshrrev_b32 v{C+4}, 3, v0
    v_lshlrev_b32 v{C+4}, 9, v{C+4}
    v_and_b32 v{C+5}, 7, v0
    v_lshl_add_u32 v{C+4}, v{C+5}, 4, v{C+4}
    v_add_u32 v{C+5}, {L_ACCW}, v{R_L16}
    v_and_b32 v{C+1}, 31, v0
    v_mul_u32_u24 v{C+1}, 48, v{C+1}
    v_lshlrev_b32 v{C+3}, 1, v0
    s_lshl_b32 s{S_U3}, s{S_R}, 6
    """)
    gr_pre(S_CB)
    gr_zaddr(S_C2)
    srd(SRD_D, KA_OUT, 2304)
    a(f"""
    s_mov_b32 exec_hi, 0
    s_barrier
    """)
    for k in range(8):
        a(f"ds_read_b128 {vr(VW+4*k,4)}, v{C+5} offset:{512*k}")
    for k in range(1, 8):
        a(f"s_waitcnt lgkmcnt({7-k})")
        a(f"v_pk_add_f32 {vr(VW,2)}, {vr(VW,2)}, {vr(VW+4*k,2)}")
        a(f"v_pk_add_f32 {vr(VW+2,2)}, {vr(VW+2,2)}, {vr(VW+4*k+2,2)}")
    tag4(VW)
    a(f"""
    buffer_store_dwordx4 {vr(VW,4)}, v{R_L16}, {sr(SRD_WS,4)}, s{S_U2} offen sc1
    s_mov_b64 exec, -1
    """)
    stamp(7)
    a(f"""
    s_cmp_ge_u32 s{S_R}, 36
    s_cbranch_scc1 L_END
    v_mov_b32 v{C+6}, 2
    """)
    gather_reduce(1, C + 4, S_U0, L_ACCR + 4)
    a(f"""
    ds_write_b32 v{VZ}, v{C+6} offset:{L_WF}
    ds_read_b32 v{C+2}, v{C+1} offset:{L_ACCR + 36}
    s_waitcnt lgkmcnt(0)
    """)
    bf16r(C + 2, C + 2)
    a(f"v_add_f32 v{C+2}, v{C+2}, v{VXS}")
    bf16r(VXS, C + 2)
    a(f"""
    s_cmp_lg_u32 s{S_R}, 0
    s_cbranch_scc1 L_NOEP
    s_add_u32 s{S_T0}, s{S_EP}, 1
    v_mov_b32 v{C+2}, s{S_T0}
    s_mov_b64 exec, 1
    buffer_store_dword v{C+2}, v{VZ}, {sr(SRD_WS,4)}, 0 offen sc1
    s_mov_b64 exec, -1
    """)
    a("L_NOEP:")
    stamp(8)
    gather_reduce(2, R_L16, S_C2, L_ACCR)
    a(f"""
    s_mov_b32 exec_hi, 0
    s_barrier
    ds_read_b128 {vr(VW,4)}, v{C+1} offset:{L_ACCR}
    ds_read_b128 {vr(VW+4,4)}, v{C+1} offset:{L_ACCR+16}
    ds_read_b32 v{C+2}, v{C+1} offset:{L_ACCR+32}
    s_waitcnt lgkmcnt(1)
    v_pk_add_f32 {vr(VW,2)}, {vr(VW,2)}, {vr(VW+2,2)}
    v_pk_add_f32 {vr(VW+4,2)}, {vr(VW+4,2)}, {vr(VW+6,2)}
    v_pk_add_f32 {vr(VW,2)}, {vr(VW,2)}, {vr(VW+4,2)}
    s_waitcnt lgkmcnt(0)
    v_add_f32 v{C+2}, v{C+2}, v{VW}
    v_add_f32 v{C+2}, v{C+2}, v{VW+1}
    """)
    bf16r(C + 2, C + 2)
    a(f"""
    v_add_f32 v{C+2}, v{C+2}, v{VXS}
    v_cvt_pk_bf16_f32 v{C+2}, v{C+2}, v{C+2}
    buffer_store_short v{C+2}, v{C+3}, {sr(SRD_D,4)}, s{S_U3} offen
    s_mov_b64 exec, -1
    """)
    stamp(9)
    if cfg.DIAG:
        a(f"""
        s_cmp_lg_u32 s{S_R}, 0
        s_cbranch_scc1 L_END
        """)
    if cfg.DIAG:
        a(f"""
        s_memrealtime s[40:41]
        s_add_u32 s44, s{KA_WS}, {WS_DBG}
        s_addc_u32 s45, s{KA_WS+1}, 0
        s_load_dwordx8 s[16:23], s[44:45], 0 glc
        s_waitcnt lgkmcnt(0)
        """)
        for k in range(8):
            a(f"s_sub_u32 s{16+k}, s40, s{16+k}")
        a("s_mov_b32 s46, s16")
        a("s_mov_b32 s47, s16")
        for k in range(1, 8):
            a(f"s_max_u32 s46, s46, s{16+k}")
            a(f"s_min_u32 s47, s47, s{16+k}")
        if cfg.DIAG == 1:
            a("s_mul_i32 s46, s46, 4")
        else:
            a("s_sub_u32 s46, s46, s47")
            a("s_mul_i32 s46, s46, 10")
        a("s_min_u32 s46, s46, 20000")
        a("L_DG:")
        a("""
        s_memrealtime s[42:43]
        s_waitcnt lgkmcnt(0)
        s_sub_u32 s47, s42, s40
        s_cmp_lt_u32 s47, s46
        s_cbranch_scc1 L_DG
        """)
    endpgm()
    a("s_nop 0 ;FORCEHOP")
    a("L_END:")
    if cfg.STAMP:
        a("L_FLUSH:")
        a(f"""
        s_mul_i32 s76, s{S_WG}, 640
        s_lshl_b32 s77, s{S_WAVE}, 6
        s_add_u32 s76, s76, s77
        s_add_u32 s76, s76, {WS_DBG}
        s_mov_b64 exec, 1
        s_waitcnt lgkmcnt(0)
        """)
        for k in range(12):
            a(f"""
            v_mov_b32 v1, s{80+2*k if k < 11 else 78}
            buffer_store_dword v1, v2, {sr(SRD_WS,4)}, s76 offen offset:{4*k}
            """)
    a("L_EXIT:")
    a("s_endpgm")
    if cfg.MOVEC:
        L = a.lines
        i0 = L.index(("l", "L_COMM:"))
        i1 = L.index(("c", "; MOVE_END"))
        blk = L[i0:i1]
        rest = L[:i0] + L[i1:]
        j = rest.index(("c", "; MOVE_HERE"))
        a.lines = rest[:j] + blk + rest[j:]
    return a


HEADER_SRC = os.path.join(HERE, "..", "cdna_kernels", NAME + ".s.ref")


def render(a, cfg, hops=None):
    head = []
    for line in open(HEADER_SRC):
        if line.startswith("; @launch"):
            head.append(f"; @launch grid=(256,1,1) block=(640,1,1) lds={L_END}\n")
            break
        head.append(line)
    out = ["".join(head)]
    out.append(f""".amdgcn_target "amdgcn-amd-amdhsa--gfx950"
.text
.globl {NAME}_kernel
.p2align 8
.type {NAME}_kernel,@function
{NAME}_kernel:
""")
    n = 0
    for kind, t in a.lines:
        if kind == "i":
            if hops and n in hops:
                for h in hops[n]:
                    out.append(h + "\n")
            out.append("    " + t + "\n")
            n += 1
        elif kind in ("l", "c"):
            out.append(("" if kind == "l" else "    ") + t + "\n")
    out.append("L_CODE_END:\n")
    if cfg.HOPS and not hops:
        for r in range(8):
            out.append(f"HOPR_{r}:\n")
        out.append("    s_endpgm\n")
    out.append(f""".section .rodata,"a"
.p2align 6
.amdhsa_kernel {NAME}_kernel
  .amdhsa_next_free_vgpr 168
  .amdhsa_next_free_sgpr {102 if cfg.STAMP else 78}
  .amdhsa_accum_offset 168
  .amdhsa_group_segment_fixed_size 0
  .amdhsa_kernarg_size 96
  .amdhsa_user_sgpr_count 2
  .amdhsa_user_sgpr_kernarg_segment_ptr 1
  .amdhsa_system_sgpr_workgroup_id_x 1
.end_amdhsa_kernel
""")
    return "".join(out)


def sizes_of(text):
    tmp = os.path.join(HERE, "_tmp.s")
    open(tmp, "w").write(text)
    subprocess.check_call(["clang", "-x", "assembler", "-target", "amdgcn-amd-amdhsa",
                           "-mcpu=gfx950", "-c", tmp, "-o", tmp + ".o"])
    dis = subprocess.check_output(["llvm-objdump", "-d", "--mcpu=gfx950", tmp + ".o"]).decode()
    sz = []
    for line in dis.splitlines():
        m = re.search(r"// ([0-9A-F]{12}): ((?:[0-9A-F]{8} ?)+)", line)
        if m:
            sz.append(4 * len(m.group(2).split()))
    return sz


def generate(cfg):
    a = build(cfg)
    if not cfg.HOPS:
        return render(a, cfg)
    sz = sizes_of(render(a, cfg))
    ins = [t for k, t in a.lines if k == "i"]
    idx = 0
    ladder = set()
    inl = False
    start = None
    for kind, t in a.lines:
        if kind == "i":
            if inl:
                ladder.add(idx)
            if t == "s_barrier":
                if start is None:
                    start = idx
                if inl == "comm":
                    inl = False
            idx += 1
        elif kind == "l":
            if t == "L_RESUME:":
                inl = False
                ladder.add(idx)
            elif t == "L_COMP:":
                inl = "comp"
            elif t == "L_COMM:":
                inl = "comm"
            elif t in ("L_EXIT:", "L_END:"):
                inl = "end"
    pos = []
    acc = 60
    for n in range(start, len(ins)):
        if (acc + sz[n] > 60 or 'FORCEHOP' in ins[n]) and n not in ladder:
            pos.append(n)
            acc = 0
        acc += sz[n]
    per = (len(pos) + 7) // 8
    hops = {}
    for k, n in enumerate(pos):
        labs = [f"HOP_{k}:"]
        if k % per == 0:
            labs.append(f"HOPR_{k // per}:")
        last = (k % per == per - 1) or k == len(pos) - 1
        tgt = "L_RESUME" if last else f"HOP_{k+1}"
        hops[n] = labs + [f"    s_cbranch_execz {tgt}"]
    assert (len(pos) - 1) // per == 7, (len(pos), per)
    return render(a, cfg, hops)


if __name__ == "__main__":
    cfg = Cfg()
    out = os.path.join(HERE, "..", "cdna_kernels", NAME + ".s")
    for arg in sys.argv[1:]:
        if arg.startswith("out="):
            out = arg[4:]
        else:
            k, v = arg.split("=")
            assert hasattr(cfg, k), k
            setattr(cfg, k, v if k == 'SCHED' else int(v, 0))
    text = generate(cfg)
    open(out, "w").write(text)
    print("wrote", out, len(text), "bytes")
```

```python
import os, re, subprocess, sys, struct

NAME = "sequential_preLN__sliding_block_cached__glu_gated_swiglu__decode"
HERE = os.path.dirname(os.path.abspath(__file__))


class Cfg:
    D = 24
    DF = 12
    DF2 = 24
    DL = 44
    PFPOS = 16
    QTRIG = 36
    HTRIG = 36
    STRIG = 48
    NTKV = 1
    LNT = 1
    HSLEEP = 0
    MG = 0
    DF3 = 4
    XS = 0
    HPIPE = 0
    RPIPE = 0
    GATE2 = 0
    MGO = 0
    OFIRST = 0
    DW = 36
    RED = 0
    PIPE = 0
    ZSLEEP = 0
    RSLEEP = 0
    YTOUCH = 1
    HYB = 0
    QUIET = 0
    DTRIG = 72
    C3 = 1
    HDELAY = 0
    MOVEC = 1
    GMASK = 63
    SCHED = 'WWWWWKKKKK'
    D0 = 24
    VD2 = 0
    VPOS = 6
    D3 = 24
    SHINT = 0
    DIAG = 0
    OTRIG = 0
    W2MID = 0
    EARLYH = 0
    OSLEEP = 0
    GATE = 0
    NTW = 0
    STAMP = 0
    HOPS = 1
    TMO_L = 0x80000
    TMO_G = 0x8000


def f2u(x):
    return struct.unpack("<I", struct.pack("<f", x))[0]


WS_EPOCH = 0
WS_QP = 0x1000
WS_ST = WS_QP + 0x20000
WS_OP = WS_ST + 0x2000
WS_HB = WS_OP + 0x40000
WS_LOC = 0x80000
WS_YP = 0x100000
WS_ZP = WS_YP + 0x10000
WS_DBG = 0x200000
WS_SIZE = 0x400000
assert WS_HB + 8 * 8192 <= WS_LOC + 0x1000 and WS_ZP + 36 * 144 * 128 <= WS_DBG

L_PROG = 0
L_XNF = 4
L_QF = 8
L_KD = 12
L_MX = 16
L_SUM = 32
L_WF = 48
L_M2 = 52
L_LNS = 64
L_WGT = 128
L_ZERO = 384
L_XN = 512
L_ONES = 2816
L_Q = 4096
L_P = 4608
L_GU = 5760
L_HH = 7296
L_O = 5760
L_ACCR = 8448
L_MXT = 9984
L_SMT = 10048
L_OS = 10240
L_V = 11264
L_WT = L_V + 65536
L_K = L_WT
L_WQ = L_WT + 65536
L_END = L_WQ + 18432
L_ACCW = L_WQ
assert L_END <= 163840

BIAS = 64
N_WQ, N_K, N_V = 18, 64, 64
P_WQ = N_WQ
P_K0 = N_WQ
P_V0 = N_WQ + N_K
P_R0 = N_WQ + N_K + N_V
NPF, NPFW = 20, 16
NW = 9


class Asm:
    def __init__(self):
        self.lines = []
        self.uid = 0

    def __call__(self, text):
        for t in text.strip().split("\n"):
            t = t.strip()
            if not t:
                continue
            if t.startswith(";"):
                self.lines.append(("c", t))
            elif t.endswith(":"):
                self.lines.append(("l", t))
            else:
                self.lines.append(("i", t))

    def lab(self, base="L"):
        self.uid += 1
        return f"{base}_{self.uid}"


def vr(a, n):
    return f"v[{a}:{a + n - 1}]"


def sr(a, n):
    return f"s[{a}:{a + n - 1}]"


S_WG, S_WAVE, S_X, S_I, S_TAG, S_EP = 2, 3, 4, 5, 6, 10
S_T0, S_T1, S_T2, S_T3, S_CNT = 11, 12, 13, 14, 15
KA_X, KA_K, KA_V, KA_WQ, KA_WO, KA_BX, KA_W1, KA_W3, KA_W2, KA_OUT, KA_DBG, KA_WS = [16 + 2 * k for k in range(12)]
SRD_A, SRD_B, SRD_C, SRD_WS, SRD_D = 40, 44, 48, 52, 56
S_KVH, S_B, S_S, S_R = 60, 61, 62, 63
S_U0, S_U1, S_U2, S_U3 = 64, 65, 66, 67
S_M8 = 68
S_PC = 70
S_CB, S_V1, S_RI, S_V0 = 72, 73, 74, 75
S_TAGF = 76
S_A0, S_A1, S_C1, S_C2 = 26, 27, 36, 37

VZ, VFF, VG16, VJ1, VTR, VONE = 2, 3, 4, 5, 6, 7
VTMP = 8
VW = 16
VB = 80
VD = 116
VA = 132
VR = 140
DPPM = "row_mask:0xf bank_mask:0xf"


def build(cfg):
    a = Asm()
    D = cfg.D
    NPF = 20 + 4 * cfg.RED

    def srd(dst, ka, size):
        a(f"""
        s_mov_b32 s{dst}, s{ka}
        s_and_b32 s{dst+1}, s{ka+1}, 0xffff
        s_mov_b32 s{dst+2}, {size}
        s_mov_b32 s{dst+3}, 0x20000
        """)

    def stamp(idx):
        if cfg.STAMP:
            a(f"s_memtime {sr(80+2*idx,2)}")

    def endpgm():
        a("s_branch L_FLUSH" if cfg.STAMP else "s_endpgm")

    def poll_ge(off, thr, vt, sleep=1):
        L = a.lab("PL")
        O = a.lab("PO")
        a(f"s_mov_b32 s{S_CNT}, {cfg.TMO_L}")
        a(f"{L}:")
        a(f"""
        ds_read_b32 v{vt}, v{VZ} offset:{off}
        s_sub_u32 s{S_CNT}, s{S_CNT}, 1
        s_cbranch_scc1 {O}
        s_waitcnt lgkmcnt(0)
        v_readfirstlane_b32 s{S_T0}, v{vt}
        """)
        if sleep:
            a(f"""
            s_cmp_ge_u32 s{S_T0}, {thr}
            s_cbranch_scc1 {O}
            s_sleep {sleep}
            s_branch {L}
            """)
        else:
            a(f"""
            s_cmp_lt_u32 s{S_T0}, {thr}
            s_cbranch_scc1 {L}
            """)
        a(f"{O}:")

    def tags_setup():
        a(f"""
        s_add_u32 s{S_TAGF}, s{S_EP}, 1
        s_mul_i32 s{S_TAGF}, s{S_TAGF}, 0x9E3779B1
        s_and_b32 s{S_TAG}, s{S_TAGF}, 0xff
        s_bfe_u32 s{S_TAG+1}, s{S_TAGF}, 0x80008
        s_bfe_u32 s{S_TAG+2}, s{S_TAGF}, 0x80010
        s_lshr_b32 s{S_TAG+3}, s{S_TAGF}, 24
        """)

    def tag4(d, rnd=True):
        if rnd:
            for k in range(4):
                a(f"v_add_u32 v{d+k}, 0x80, v{d+k}")
        for k in range(4):
            a(f"v_bfi_b32 v{d+k}, v{VFF}, s{S_TAG+k}, v{d+k}")

    def chk4(acc, d, first):
        for k in range(4):
            a(f"v_xor_b32 v{d+k}, s{S_TAG+k}, v{d+k}")
        if first:
            a(f"v_or3_b32 v{acc}, v{d}, v{d+1}, v{d+2}")
            a(f"v_or_b32 v{acc}, v{acc}, v{d+3}")
        else:
            a(f"v_or3_b32 v{acc}, v{acc}, v{d}, v{d+1}")
            a(f"v_or3_b32 v{acc}, v{acc}, v{d+2}, v{d+3}")

    def chk_end(acc, retry, done, cnt=S_CNT, toggle=None, tmask=15):
        a(f"""
        v_and_b32 v{acc}, v{VFF}, v{acc}
        v_cmp_ne_u32 vcc, 0, v{acc}
        s_cbranch_vccz {done}
        s_sub_u32 s{cnt}, s{cnt}, 1
        s_cbranch_scc1 {done}
        """)
        if toggle is not None:
            cur, base = toggle
            a(f"""
            s_and_b32 s{S_T0}, s{cnt}, {tmask}
            s_cmp_eq_u32 s{S_T0}, 0
            s_cselect_b32 s{cur}, 0, {WS_LOC}
            s_add_u32 s{cur}, s{cur}, s{base}
            """)
        a(f"s_branch {retry}")
        a(f"{done}:")

    S_MK = S_T3

    def mgather(n, dst, vaddr, soff, on_valid, toggle=None, pre_issued=False, extra=None, on_retry=None, sleep=0, masked=None):
        LOOP = a.lab("MG")
        CHK = a.lab("MC")
        DONE = a.lab("MD")
        if not (cfg.MG if masked is None else masked):
            a(f"s_mov_b32 s{S_CNT}, {cfg.TMO_G}")
            if pre_issued:
                a(f"s_branch {CHK}")
            a(f"{LOOP}:")
            for k in range(n):
                off = f" offset:{1024*k}" if k else ""
                a(f"buffer_load_dwordx4 {vr(dst+4*k,4)}, v{vaddr}, {sr(SRD_WS,4)}, s{soff} offen{off} sc1")
            a(f"{CHK}:")
            for k in range(n):
                a(f"s_waitcnt vmcnt({n-1-k})")
                chk4(VTMP + 1, dst + 4 * k, k == 0)
                on_valid(k, True)
            a(f"""
            v_and_b32 v{VTMP+1}, v{VFF}, v{VTMP+1}
            v_cmp_ne_u32 vcc, 0, v{VTMP+1}
            s_cbranch_vccz {DONE}
            s_sub_u32 s{S_CNT}, s{S_CNT}, 1
            s_cbranch_scc1 {DONE}
            """)
            if toggle is not None:
                cur, base = toggle
                a(f"""
                s_and_b32 s{S_T0}, s{S_CNT}, {cfg.GMASK}
                s_cmp_eq_u32 s{S_T0}, 0
                s_cselect_b32 s{cur}, 0, {WS_LOC}
                s_add_u32 s{cur}, s{cur}, s{base}
                """)
            if on_retry is not None:
                on_retry()
            if sleep:
                a(f"s_sleep {sleep}")
            a(f"s_branch {LOOP}")
            a(f"{DONE}:")
            return
        a(f"""
        s_mov_b32 s{S_MK}, {(1 << n) - 1}
        s_mov_b32 s{S_CNT}, {cfg.TMO_G}
        """)
        if pre_issued:
            a(f"s_waitcnt vmcnt({extra})")
            a(f"s_branch {CHK}")
        a(f"{LOOP}:")
        if cfg.STAMP == 4 and toggle is not None:
            stamp(0)
        for k in range(n):
            sk = a.lab("MS")
            off = f" offset:{1024*k}" if k else ""
            a(f"""
            s_bitcmp1_b32 s{S_MK}, {k}
            s_cbranch_scc0 {sk}
            buffer_load_dwordx4 {vr(dst+4*k,4)}, v{vaddr}, {sr(SRD_WS,4)}, s{soff} offen{off} sc1
            """)
            a(f"{sk}:")
        a("s_waitcnt vmcnt(0)")
        if cfg.STAMP == 4 and toggle is not None:
            sk = a.lab("MZ")
            a(f"""
            s_cmp_lg_u32 s{S_CNT}, {cfg.TMO_G}
            s_cbranch_scc1 {sk}
            """)
            stamp(1)
            a(f"{sk}:")
        a(f"{CHK}:")
        for k in range(n):
            nx = a.lab("MN")
            a(f"""
            s_bitcmp1_b32 s{S_MK}, {k}
            s_cbranch_scc0 {nx}
            """)
            chk4(VTMP + 1, dst + 4 * k, True)
            a(f"""
            v_and_b32 v{VTMP+1}, v{VFF}, v{VTMP+1}
            v_cmp_ne_u32 vcc, 0, v{VTMP+1}
            s_cbranch_vccnz {nx}
            s_bitset0_b32 s{S_MK}, {k}
            """)
            on_valid(k, False)
            a(f"{nx}:")
        a(f"""
        s_cmp_eq_u32 s{S_MK}, 0
        s_cbranch_scc1 {DONE}
        s_sub_u32 s{S_CNT}, s{S_CNT}, 1
        s_cbranch_scc1 {DONE}
        """)
        if toggle is not None:
            cur, base = toggle
            a(f"""
            s_and_b32 s{S_T0}, s{S_CNT}, {cfg.GMASK}
            s_cmp_eq_u32 s{S_T0}, 0
            s_cselect_b32 s{cur}, 0, {WS_LOC}
            s_add_u32 s{cur}, s{cur}, s{base}
            """)
        if on_retry is not None:
            on_retry()
        if sleep:
            a(f"s_sleep {sleep}")
        a(f"s_branch {LOOP}")
        a(f"{DONE}:")

    def pgather(n, bases, vaddr, soff, on_ok):
        LOOP = a.lab("PG")
        DONE = a.lab("PD")
        oks = [a.lab("PK") for _ in bases]
        ns = len(bases)

        def issue(b):
            for k in range(n):
                off = f" offset:{1024*k}" if k else ""
                a(f"buffer_load_dwordx4 {vr(b+4*k,4)}, v{vaddr}, {sr(SRD_WS,4)}, s{soff} offen{off} sc1")

        a(f"s_mov_b32 s{S_CNT}, {cfg.TMO_G}")
        for j, b in enumerate(bases):
            issue(b)
            if j < ns - 1:
                a("s_sleep 1")
        a(f"{LOOP}:")
        for j, b in enumerate(bases):
            a(f"s_waitcnt vmcnt({n*(ns-1)})")
            for k in range(n):
                chk4(VTMP + 1, b + 4 * k, k == 0)
            a(f"""
            v_and_b32 v{VTMP+1}, v{VFF}, v{VTMP+1}
            v_cmp_ne_u32 vcc, 0, v{VTMP+1}
            s_cbranch_vccz {oks[j]}
            """)
            issue(b)
        a(f"""
        s_sub_u32 s{S_CNT}, s{S_CNT}, 1
        s_cbranch_scc0 {LOOP}
        s_waitcnt vmcnt(0)
        """)
        for j, b in enumerate(bases):
            a(f"{oks[j]}:")
            on_ok(b)
            if j < ns - 1:
                a(f"s_branch {DONE}")
        a("s_nop 0")
        a(f"{DONE}:")
        a("s_nop 0")

    def pub(data, vaddr, soff):
        a(f"""
        s_add_u32 s{S_T0}, s{soff}, {WS_LOC}
        buffer_store_dwordx4 {vr(data,4)}, v{vaddr}, {sr(SRD_WS,4)}, s{S_T0} offen
        buffer_store_dwordx4 {vr(data,4)}, v{vaddr}, {sr(SRD_WS,4)}, s{soff} offen sc1
        """)

    def half_reduce(v, t):
        a(f"""
        s_nop 1
        v_add_f32_dpp v{v}, v{v}, v{v} quad_perm:[1,0,3,2] {DPPM}
        s_nop 1
        v_add_f32_dpp v{v}, v{v}, v{v} quad_perm:[2,3,0,1] {DPPM}
        s_nop 1
        v_add_f32_dpp v{v}, v{v}, v{v} row_half_mirror {DPPM}
        s_nop 1
        v_add_f32_dpp v{v}, v{v}, v{v} row_mirror {DPPM}
        v_mov_b32 v{t}, v{v}
        s_nop 1
        v_permlane16_swap_b32 v{v}, v{t}
        v_add_f32 v{v}, v{v}, v{t}
        """)

    def bf16r(dst, src):
        a(f"""
        v_cvt_pk_bf16_f32 v{dst}, v{src}, v{src}
        v_lshlrev_b32 v{dst}, 16, v{dst}
        """)

    def ln_tail(vs, vq, vt):
        a(f"""
        v_cvt_pk_bf16_f32 v{vt}, v{vs}, v{vq}
        v_and_b32 v{vq}, 0xffff0000, v{vt}
        v_lshlrev_b32 v{vs}, 16, v{vt}
        v_add_f32 v{vq}, {hex(f2u(1e-5))}, v{vq}
        v_xor_b32 v{vs}, 0x80000000, v{vs}
        """)
        bf16r(vq, vq)
        a(f"""
        v_sqrt_f32 v{vq}, v{vq}
        s_nop 0
        """)
        bf16r(vq, vq)
        a(f"v_rcp_f32 v{vq}, v{vq}")

    def lane_setup():
        a(f"""
        v_mov_b32 v{VFF}, 0xff
        v_mov_b32 v{VONE}, 1
        v_mov_b32 v{VR}, 0
        v_lshlrev_b32 v{VR+9}, 4, v0
        v_lshrrev_b32 v{VTMP}, 4, v0
        v_lshlrev_b32 v{VG16}, 4, v{VTMP}
        v_and_b32 v{VJ1}, 1, v0
        v_bfe_u32 v{VTMP+1}, v0, 2, 2
        v_lshl_add_u32 v{VTMP+2}, v{VTMP}, 3, v{VTMP+1}
        v_lshlrev_b32 v{VTMP+2}, 7, v{VTMP+2}
        v_bfe_u32 v{VTMP+3}, v0, 3, 1
        v_bfe_u32 v{VTMP+4}, v0, 4, 1
        v_lshl_or_b32 v{VTMP+3}, v{VTMP+4}, 1, v{VTMP+3}
        v_lshlrev_b32 v{VTMP+3}, 5, v{VTMP+3}
        v_and_b32 v{VTMP+4}, 3, v0
        v_lshl_or_b32 v{VTMP+3}, v{VTMP+4}, 3, v{VTMP+3}
        v_add_u32 v{VTR}, v{VTMP+2}, v{VTMP+3}
        """)

    def role_idx():
        a(f"""
        s_mul_i32 s{S_RI}, s{S_X}, 18
        s_add_u32 s{S_RI}, s{S_RI}, s{S_I}
        s_sub_u32 s{S_T0}, s{S_I}, 18
        s_lshl_b32 s{S_R}, s{S_T0}, 3
        s_add_u32 s{S_R}, s{S_R}, s{S_X}
        s_cmp_ge_u32 s{S_I}, 18
        s_cselect_b32 s{S_RI}, s{S_T0}, s{S_RI}
        """)

    R_ST = VR
    R_BA = VR + 1
    R_AA = VR + 5
    R_L16 = VR + 9
    R_HL = VR + 10
    R_XL = VR + 11
    R_F1 = VR + 13
    R_F2 = VR + 14
    R_F3 = VR + 15
    R_HW = VR + 16
    R_G0 = VR + 17
    R_G1 = VR + 18
    R_LS = VR + 19
    R_RW = VR + 20
    R_WG = VR + 21

    def cb_baddr(rowpitch, base_s):
        a(f"""
        v_mul_u32_u24 v{VTMP+1}, {rowpitch}, v{VJ1}
        v_add3_u32 v{VTMP+1}, v{VTMP+1}, v{VG16}, s{base_s}
        v_bfe_u32 v{VTMP+2}, v0, 1, 3
        v_mov_b32 v{VTMP+3}, {L_ZERO}
        """)
        for nt in range(4):
            a(f"""
            v_cmp_eq_u32 vcc, {nt}, v{VTMP+2}
            s_nop 1
            v_cndmask_b32 v{R_BA+nt}, v{VTMP+3}, v{VTMP+1}, vcc
            """)

    def cb_aaddr(base_s):
        for nt in range(4):
            a(f"v_xor_b32 v{R_AA+nt}, {nt*32}, v{VTR}")
        for nt in range(4):
            a(f"v_add_u32 v{R_AA+nt}, s{base_s}, v{R_AA+nt}")

    def cb_aread(nks, ksstride, dst=VW):
        for ks in range(nks):
            for nt in range(4):
                r = dst + (ks * 4 + nt) * 4
                a(f"ds_read_b64_tr_b16 {vr(r,2)}, v{R_AA+nt} offset:{ks*ksstride}")
                a(f"ds_read_b64_tr_b16 {vr(r+2,2)}, v{R_AA+nt} offset:{ks*ksstride+512}")

    def cb_bread(nks):
        for ks in range(nks):
            for nt in range(4):
                off = f" offset:{ks*64}" if ks else ""
                a(f"ds_read_b128 {vr(VB+(ks*4+nt)*4,4)}, v{R_BA+nt}{off}")

    def cb_mfma(nks, src=VW):
        n = nks * 4
        for k in range(n):
            a(f"s_waitcnt lgkmcnt({n-1-k})")
            c = "0" if k == 0 else vr(VD, 4)
            a(f"v_mfma_f32_16x16x32_bf16 {vr(VD,4)}, {vr(src+k*4,4)}, {vr(VB+k*4,4)}, {c}")
        a(f"""
        s_mov_b32 exec_lo, 0x00ff00ff
        s_mov_b32 exec_hi, 0x00ff00ff
        s_nop 5
        """)

    def f2_pre():
        a(f"""
        s_lshl_b32 s{S_T1}, s{S_CB}, 7
        s_add_u32 s{S_T1}, s{S_T1}, {L_HH}
        """)
        cb_baddr(64, S_T1)
        a(f"""
        v_lshl_add_u32 v{R_HW}, v0, 1, s{S_T1}
        v_bfe_u32 v{VTMP+1}, v0, 2, 1
        v_mad_u32_u24 v{VTMP+1}, v{VJ1}, 18, v{VTMP+1}
        v_mul_u32_u24 v{R_ST}, {144*128}, v{VTMP+1}
        v_bfe_u32 v{VTMP+1}, v0, 1, 1
        v_lshl_add_u32 v{VTMP+1}, v{VTMP+1}, 6, v{VG16}
        v_add_u32 v{R_ST}, v{R_ST}, v{VTMP+1}
        s_mul_i32 s{S_C1}, s{S_CB}, {2*144*128}
        s_lshl_b32 s{S_T0}, s{S_RI}, 7
        s_add_u32 s{S_C1}, s{S_C1}, s{S_T0}
        s_add_u32 s{S_C1}, s{S_C1}, {WS_ZP}
        v_lshlrev_b32 v{R_G0}, 2, v0
        v_and_b32 v{R_G1}, 31, v0
        v_lshlrev_b32 v{R_G1}, 2, v{R_G1}
        v_lshrrev_b32 v{R_LS}, 5, v0
        v_lshlrev_b32 v{R_LS}, 3, v{R_LS}
        s_lshl_b32 s{S_T1}, s{S_CB}, 12
        s_add_u32 s{S_T1}, s{S_T1}, {L_V}
        """)
        cb_aaddr(S_T1)

    def h_pre(cb=S_CB, sd=S_U2):
        srd(SRD_A, KA_X, 2304)
        a(f"""
        v_bfe_u32 v{R_HL}, v0, 4, 1
        v_mul_u32_u24 v{R_HL}, 1152, v{R_HL}
        v_and_b32 v{VTMP+1}, 15, v0
        v_lshl_add_u32 v{R_HL}, v{VTMP+1}, 3, v{R_HL}
        v_lshrrev_b32 v{VTMP+1}, 5, v0
        v_lshl_add_u32 v{R_HL}, v{VTMP+1}, 2, v{R_HL}
        s_lshl_b32 s{S_T0}, s{cb}, 7
        v_add_u32 v{R_HL}, s{S_T0}, v{R_HL}
        buffer_load_dword v{R_XL}, v{R_HL}, {sr(SRD_A,4)}, 0 offen
        s_lshl_b32 s{sd}, s{cb}, 12
        s_add_u32 s{sd}, s{sd}, {WS_YP}
        """)

    def h_gather():
        R = a.lab("HG")
        Dn = a.lab("HD")
        a(f"""
        s_waitcnt vmcnt(0)
        v_and_b32 v{R_XL+1}, 0xffff0000, v{R_XL}
        v_lshlrev_b32 v{R_XL}, 16, v{R_XL}
        s_mov_b32 s{S_CNT}, {cfg.TMO_G}
        """)
        a(f"{R}:")
        for k in range(4):
            a(f"buffer_load_dwordx4 {vr(VB+4*k,4)}, v{R_L16}, {sr(SRD_WS,4)}, s{S_C2} offen offset:{1024*k} sc1")
        for k in range(4):
            a(f"s_waitcnt vmcnt({3-k})")
            chk4(VTMP + 1, VB + 4 * k, k == 0)
            if k == 1:
                a(f"v_pk_add_f32 {vr(VB+16,2)}, {vr(VB,2)}, {vr(VB+4,2)}")
                a(f"v_pk_add_f32 {vr(VB+18,2)}, {vr(VB+2,2)}, {vr(VB+6,2)}")
            if k == 2:
                a(f"v_pk_add_f32 {vr(VB+16,2)}, {vr(VB+16,2)}, {vr(VB+8,2)}")
                a(f"v_pk_add_f32 {vr(VB+18,2)}, {vr(VB+18,2)}, {vr(VB+10,2)}")
        a(f"v_pk_add_f32 {vr(VB+16,2)}, {vr(VB+16,2)}, {vr(VB+12,2)}")
        a(f"v_pk_add_f32 {vr(VB+18,2)}, {vr(VB+18,2)}, {vr(VB+14,2)}")
        chk_end(VTMP + 1, R, Dn)
        q = VB + 16
        a(f"""
        v_permlane32_swap_b32 v{q}, v{q+2}
        v_permlane32_swap_b32 v{q+1}, v{q+3}
        v_pk_add_f32 {vr(q,2)}, {vr(q,2)}, {vr(q+2,2)}
        v_cvt_pk_bf16_f32 v{q}, v{q}, v{q+1}
        v_and_b32 v{q+1}, 0xffff0000, v{q}
        v_lshlrev_b32 v{q}, 16, v{q}
        v_add_f32 v{q}, v{q}, v{R_XL}
        v_add_f32 v{q+1}, v{q+1}, v{R_XL+1}
        v_cvt_pk_bf16_f32 v{q}, v{q}, v{q+1}
        ds_write_b32 v{R_HL}, v{q} offset:{L_XN}
        s_waitcnt lgkmcnt(0)
        """)

    R_VF = VW + 56
    R_VC = VW + 60

    HGD, HGQ = VW, VW + 52

    def h_finish(to_lds=False):
        q = HGQ
        a(f"""
        v_permlane32_swap_b32 v{q}, v{q+2}
        v_permlane32_swap_b32 v{q+1}, v{q+3}
        v_pk_add_f32 {vr(q,2)}, {vr(q,2)}, {vr(q+2,2)}
        v_cvt_pk_bf16_f32 v{q}, v{q}, v{q+1}
        v_and_b32 v{q+1}, 0xffff0000, v{q}
        v_lshlrev_b32 v{q}, 16, v{q}
        v_add_f32 v{q}, v{q}, v{R_XL}
        v_add_f32 v{q+1}, v{q+1}, v{R_XL+1}
        v_cvt_pk_bf16_f32 v{q}, v{q}, v{q+1}
        """)
        if to_lds:
            a(f"""
            ds_write_b32 v{R_HL}, v{q} offset:{L_XN}
            s_mov_b64 exec, 1
            ds_add_u32 v{VZ}, v{VONE} offset:{L_XNF}
            s_mov_b64 exec, -1
            """)
            return
        a(f"""
        v_mov_b32 v{q+2}, s{S_TAGF}
        v_mov_b32 v{q+1}, v{q}
        v_mov_b32 v{q+3}, s{S_TAGF}
        s_nop 0
        v_permlane32_swap_b32 v{q}, v{q+1}
        s_mov_b32 exec_hi, 0
        """)
        pub(q, R_L16, S_U3)
        a("s_mov_b64 exec, -1")

    F_ALL = BIAS + P_R0 + NPF + (108 if cfg.W2MID else 72)

    def f_frags(k0, k1):
        for ks in range(k0, k1):
            a(f"ds_read_b64_tr_b16 {vr(VW+16+ks*4,2)}, v{R_F1} offset:{ks*2048}")
            a(f"ds_read_b64_tr_b16 {vr(VW+16+ks*4+2,2)}, v{R_F1} offset:{ks*2048+256}")

    def h_get(on_retry=None, sleep=0, sa=S_U2, to_lds=False):
        if cfg.MG:
            for d in range(4):
                a(f"v_mov_b32 v{HGQ+d}, 0")

        def h_valid(k, inorder):
            if inorder and k == 0:
                return
            p = HGD if inorder and k == 1 else HGQ
            a(f"v_pk_add_f32 {vr(HGQ,2)}, {vr(p,2)}, {vr(HGD+4*k,2)}")
            a(f"v_pk_add_f32 {vr(HGQ+2,2)}, {vr(p+2,2)}, {vr(HGD+4*k+2,2)}")

        mgather(4, HGD, R_L16, sa, h_valid, on_retry=on_retry, sleep=sleep)
        h_finish(to_lds)


    def h_direct(out_label):
        W1 = a.lab("DW")
        W2 = a.lab("DX")
        a(f"s_mov_b32 s{S_CNT}, {cfg.TMO_L}")
        a(f"{W1}:")
        a(f"""
        ds_read_b64 {vr(VTMP,2)}, v{VZ} offset:{L_PROG}
        s_sub_u32 s{S_CNT}, s{S_CNT}, 1
        s_cbranch_scc1 {W2}
        s_waitcnt lgkmcnt(0)
        v_readfirstlane_b32 s{S_T1}, v{VTMP+1}
        v_readfirstlane_b32 s{S_T0}, v{VTMP}
        s_cmp_ge_u32 s{S_T1}, 10
        s_cbranch_scc1 {out_label}
        s_cmp_lt_u32 s{S_T0}, {BIAS + P_R0 + NPF + cfg.DTRIG}
        s_cbranch_scc1 {W1}
        """)
        a(f"{W2}:")

        def rt():
            a(f"""
            ds_read_b32 v{VTMP}, v{VZ} offset:{L_XNF}
            s_waitcnt lgkmcnt(0)
            v_readfirstlane_b32 s{S_T0}, v{VTMP}
            s_cmp_ge_u32 s{S_T0}, 10
            s_cbranch_scc1 {out_label}
            """)

        h_get(on_retry=rt, sa=S_C2, to_lds=True)

    def x_unpack():
        a(f"""
        s_waitcnt vmcnt(0)
        v_and_b32 v{R_XL+1}, 0xffff0000, v{R_XL}
        v_lshlrev_b32 v{R_XL}, 16, v{R_XL}
        """)

    def gr_pre(slot_s):
        a(f"""
        v_and_b32 v{R_RW}, 7, v0
        v_lshlrev_b32 v{R_RW}, 2, v{R_RW}
        v_lshrrev_b32 v{VTMP+1}, 4, v0
        v_add_u32 v{R_RW}, v{VTMP+1}, v{R_RW}
        v_mul_u32_u24 v{R_RW}, 48, v{R_RW}
        s_lshl_b32 s{S_T0}, s{slot_s}, 2
        v_add_u32 v{R_RW}, s{S_T0}, v{R_RW}
        """)

    def gr_zaddr(dst_s):
        a(f"""
        s_mul_i32 s{dst_s}, s{S_R}, {144*128}
        s_lshl_b32 s{S_T0}, s{S_CB}, 11
        s_add_u32 s{dst_s}, s{dst_s}, s{S_T0}
        s_add_u32 s{dst_s}, s{dst_s}, {WS_ZP}
        """)

    def gather_reduce(nld, vaddr, soff, lacc):
        q = VB + 8
        if cfg.PIPE and nld == 2:
            q = VB + 24
        elif cfg.MG:
            for d in range(4):
                a(f"v_mov_b32 v{q+d}, 0")

        def g_valid(k, inorder):
            if inorder and nld == 2 and k == 0:
                return
            if inorder and nld == 1:
                for d in range(4):
                    a(f"v_mov_b32 v{q+d}, v{VB+d}")
                return
            p = VB if inorder else q
            a(f"v_pk_add_f32 {vr(q,2)}, {vr(p,2)}, {vr(VB+4*k,2)}")
            a(f"v_pk_add_f32 {vr(q+2,2)}, {vr(p+2,2)}, {vr(VB+4*k+2,2)}")

        if cfg.PIPE and nld == 2:
            def z_ok(b):
                a(f"v_pk_add_f32 {vr(q,2)}, {vr(b,2)}, {vr(b+4,2)}")
                a(f"v_pk_add_f32 {vr(q+2,2)}, {vr(b+2,2)}, {vr(b+6,2)}")
            pgather(2, [VB, VB + 8, VB + 16][:cfg.PIPE], vaddr, soff, z_ok)
        else:
            mgather(nld, VB, vaddr, soff, g_valid, sleep=(cfg.ZSLEEP if nld == 2 else 2))
        a(f"""
        v_permlane32_swap_b32 v{q}, v{q+2}
        v_permlane32_swap_b32 v{q+1}, v{q+3}
        v_pk_add_f32 {vr(q,2)}, {vr(q,2)}, {vr(q+2,2)}
        s_nop 1
        v_permlane16_swap_b32 v{q}, v{q+1}
        v_add_f32 v{q}, v{q}, v{q+1}
        s_nop 1
        v_add_f32_dpp v{q}, v{q}, v{q} row_ror:8 {DPPM}
        ds_write_b32 v{R_RW}, v{q} offset:{lacc}
        s_waitcnt lgkmcnt(0)
        """)

    if cfg.STAMP:
        a(f"s_memrealtime {sr(100,2)}")
        a(f"s_memtime {sr(78,2)}")
        for k in range(80, 100, 2):
            a(f"s_mov_b64 {sr(k,2)}, 0")
    if cfg.DIAG:
        a("s_memrealtime s[76:77]")
    a(f"""
    s_cmp_ge_u32 s{S_WG}, 256
    s_cbranch_scc1 L_EXIT
    s_load_dwordx16 {sr(16,16)}, s[0:1], 0
    s_load_dwordx8 {sr(32,8)}, s[0:1], 64
    """)
    if cfg.HOPS:
        a(f"""
        v_cmp_gt_u32 vcc, 128, v0
        s_getpc_b64 {sr(S_PC,2)}
        """)
        a("L_PCREF:")
        a(f"""
        v_lshlrev_b32 v1, 7, v0
        s_cbranch_vccz L_NOPF
        v_min_u32 v1, L_CODE_END-L_PCREF-4, v1
        global_load_dword v167, v1, {sr(S_PC,2)}
        """)
        a("L_NOPF:")
    a(f"""
    v_lshrrev_b32 v1, 6, v0
    v_and_b32 v0, 63, v0
    v_readfirstlane_b32 s{S_T1}, v1
    s_and_b32 s{S_X}, s{S_WG}, 7
    s_lshr_b32 s{S_I}, s{S_WG}, 3
    s_lshr_b32 s{S_T0}, s{S_I}, 4
    s_lshl_b32 s{S_KVH}, s{S_X}, 1
    s_add_u32 s{S_KVH}, s{S_KVH}, s{S_T0}
    s_bfe_u32 s{S_B}, s{S_I}, 0x10003
    s_and_b32 s{S_S}, s{S_I}, 7
    s_mov_b32 s{S_M8}, 0x00030003
    s_mov_b32 s{S_M8+1}, 0x00030003
    v_mov_b32 v{VZ}, 0
    s_sub_u32 s{S_WAVE}, s{S_T1}, 2
    s_sub_u32 s{S_T0}, 9, s{S_T1}
    s_cmp_lt_u32 s{S_T1}, 2
    s_cselect_b32 s{S_WAVE}, s{S_T0}, s{S_WAVE}
    s_min_u32 s{S_CB}, s{S_WAVE}, 8
    s_cmp_eq_u32 s{S_WAVE}, 8
    s_cbranch_scc1 L_COMM
    s_cmp_eq_u32 s{S_WAVE}, 9
    s_cbranch_scc0 L_COMP
    """)

    LA = VB
    LKV = VB + 4
    LF = VB + 6
    LP = VB + 10
    LT = VB + 11
    LLIN = VB + 14
    pol = {"late": False}

    def coffs(dst, pitch):
        a(f"""
        v_lshrrev_b32 v{LT}, 3, v0
        v_mul_u32_u24 v{LT}, {pitch}, v{LT}
        v_bfe_u32 v{LT+1}, v0, 4, 1
        v_lshlrev_b32 v{LT+1}, 1, v{LT+1}
        v_and_b32 v{LT+2}, 7, v0
        v_xor_b32 v{LT+1}, v{LT+1}, v{LT+2}
        v_lshl_add_u32 v{dst}, v{LT+1}, 4, v{LT}
        v_xor_b32 v{dst+1}, 64, v{dst}
        v_add_u32 v{dst+1}, {8*pitch-1024}, v{dst+1}
        v_add_u32 v{dst+2}, {2*(8*pitch-1024)}, v{dst}
        v_add_u32 v{dst+3}, {2*(8*pitch-1024)}, v{dst+1}
        """)

    def group(srdr, vo, soff, n=4):
        kv = vo[0] == LKV or (vo[0] == LA and not pol["late"])
        nt = " nt" if (cfg.NTKV if kv else cfg.NTW) else ""
        for j in range(n):
            off = f" offset:{1024*j}" if j else ""
            a(f"buffer_load_dwordx4 v{vo[j]}, {sr(srdr,4)}, s{soff} offen{off}{nt} lds")

    def report(n, d):
        a(f"""
        v_add_u32 v{LP}, {n}, v{LP}
        s_waitcnt vmcnt({d})
        ds_write_b32 v{VZ}, v{LP} offset:{L_PROG}
        """)

    def redepth(dp, dn):
        if dn < dp:
            assert (dp - dn) % 4 == 0
            for k in range(dp - 4, dn - 1, -4):
                report(4, k)
        elif dn > dp:
            a(f"v_subrev_u32 v{LP}, {dn-dp}, v{LP}")

    def kvstep():
        a(f"""
        s_add_u32 s{S_U0}, s{S_U0}, 4096
        s_and_b32 s{S_U0}, s{S_U0}, 0xffff
        s_or_b32 s{S_U0}, s{S_U0}, s{S_V0}
        """)

    def stream(srdr, vo, soff_step, ngroups, d, m0step=4096):
        L = a.lab("ST")
        a(f"s_mov_b32 s{S_U1}, {ngroups}")
        a(f"{L}:")
        group(srdr, vo, S_U0)
        if soff_step == "kv":
            kvstep()
        else:
            a(f"s_add_u32 s{S_U0}, s{S_U0}, {soff_step}")
        if m0step:
            a(f"s_add_u32 m0, m0, {m0step}")
        report(4, d)
        a(f"""
        s_sub_u32 s{S_U1}, s{S_U1}, 1
        s_cmp_lg_u32 s{S_U1}, 0
        s_cbranch_scc1 {L}
        """)

    a("L_LOAD:")
    a("s_setprio 3")
    coffs(LA, 8192)
    a(f"""
    v_lshrrev_b32 v{LT}, 4, v0
    v_lshlrev_b32 v{LT+1}, 1, v{LT}
    v_and_b32 v{LT+2}, 15, v0
    v_xor_b32 v{LT+1}, v{LT+1}, v{LT+2}
    v_lshlrev_b32 v{LT}, 8, v{LT}
    v_lshl_add_u32 v{LKV}, v{LT+1}, 4, v{LT}
    v_xor_b32 v{LKV+1}, 128, v{LKV}
    s_lshr_b32 s{S_T0}, s{S_I}, 3
    s_mul_i32 s{S_U0}, s{S_T0}, {144*8192}
    s_lshl_b32 s{S_T0}, s{S_X}, 10
    s_add_u32 s{S_U0}, s{S_U0}, s{S_T0}
    s_lshl_b32 s{S_T0}, s{S_S}, 7
    s_add_u32 s{S_U0}, s{S_U0}, s{S_T0}
    s_lshl_b32 s{S_V0}, s{S_B}, 4
    s_add_u32 s{S_V0}, s{S_V0}, s{S_KVH}
    s_lshl_b32 s{S_V0}, s{S_V0}, 21
    s_lshl_b32 s{S_T0}, s{S_S}, 16
    s_add_u32 s{S_V0}, s{S_V0}, s{S_T0}
    s_add_u32 s{S_V0}, s{S_V0}, {6144*256}
    s_mul_i32 s{S_V1}, s{S_WG}, 0x2f
    s_lshr_b32 s{S_T0}, s{S_WG}, 4
    s_add_u32 s{S_V1}, s{S_V1}, s{S_T0}
    s_and_b32 s{S_V1}, s{S_V1}, 15
    s_lshl_b32 s{S_V1}, s{S_V1}, 12
    s_or_b32 s{S_V1}, s{S_V1}, s{S_V0}
    s_mov_b32 m0, {L_WQ}
    s_waitcnt lgkmcnt(0)
    """)
    stamp(1)
    srd(SRD_A, KA_WQ, 576 * 4096 * 2)
    la = [LA, LA + 1, LA + 2, LA + 3]
    lkv = [LKV, LKV + 1, LKV, LKV + 1]
    lf = [LF, LF + 1, LF + 2, LF + 3]
    llin = [LLIN] * 4
    sched = cfg.SCHED
    a(f"""
    s_mov_b32 s{S_U2}, s{S_U0}
    s_mov_b32 s{S_U0}, s{S_V1}
    """)
    issued = 0
    nw = nk = 0
    barrier_done = False
    srdb = False
    for ch in sched:
        n = 4
        if not barrier_done and issued + 4 > cfg.D0:
            srd(SRD_C, KA_V, 2 * 16 * 8192 * 256)
            srd(SRD_WS, KA_WS, WS_SIZE)
            a(f"""
            s_load_dword s{S_EP}, {sr(KA_WS,2)}, {WS_EPOCH}
            v_mov_b32 v{LP}, {BIAS - cfg.D0 + issued}
            """)
            stamp(2)
            a("s_barrier")
            if cfg.MOVEC:
                a("s_branch L_LOAD2")
                a("; MOVE_HERE")
                a("L_LOAD2:")
            barrier_done = True
        if ch == "W":
            n = 4 if nw < 4 else 2
            a(f"s_mov_b32 m0, {L_WQ + 4096*nw}")
            if nw:
                a(f"s_add_u32 s{S_U2}, s{S_U2}, {32*8192}")
            else:
                a("s_nop 0")
            group(SRD_A, la, S_U2, n)
            nw += 1
            if nw == 5:
                P_WQE = issued + n
        else:
            if not srdb:
                srd(SRD_B, KA_K, 2 * 16 * 8192 * 256)
                srdb = True
            a(f"s_mov_b32 m0, {L_K + 4096*nk}")
            if nk:
                kvstep()
            else:
                a("s_nop 0")
            group(SRD_B, lkv, S_U0)
            nk += 1
        issued += n
        if barrier_done:
            report(n, cfg.D0)
    assert nw == 5 and barrier_done and nk <= 8
    PRE = nk
    a(f"s_mov_b32 m0, {L_K + 4096*nk}")
    kvstep()
    redepth(cfg.D0, D)
    cfg._pwq = P_WQE
    lane_setup()
    role_idx()
    coffs(LA, 1152)
    pol["late"] = True
    a(f"""
    v_lshlrev_b32 v{LLIN}, 4, v0
    v_lshrrev_b32 v{LT}, 2, v0
    v_mul_u32_u24 v{LT}, 9216, v{LT}
    v_lshrrev_b32 v{LT+1}, 5, v0
    v_lshlrev_b32 v{LT+1}, 1, v{LT+1}
    v_and_b32 v{LT+2}, 3, v0
    v_xor_b32 v{LT+1}, v{LT+1}, v{LT+2}
    v_lshl_add_u32 v{LF}, v{LT+1}, 4, v{LT}
    v_add_u32 v{LF+1}, {16*9216-1024}, v{LF}
    v_add_u32 v{LF+2}, {2*(16*9216-1024)}, v{LF}
    v_add_u32 v{LF+3}, {3*(16*9216-1024)}, v{LF}
    """)
    stream(SRD_B, lkv, "kv", 4, D)
    f2_pre()
    stream(SRD_B, lkv, "kv", 12 - PRE, D)
    a(f"""
    s_mov_b32 m0, {L_V}
    s_mov_b32 s{S_U0}, s{S_V1}
    """)
    stamp(6)
    srd(SRD_A, KA_WO, 4096 * 576 * 2)
    assert 4 * cfg.PFPOS >= D
    if cfg.VD2:
        assert cfg.PFPOS == 16
        stream(SRD_C, lkv, "kv", cfg.VPOS, D)
        redepth(D, cfg.VD2)
        stream(SRD_C, lkv, "kv", 16 - cfg.VPOS, cfg.VD2)
        redepth(cfg.VD2, cfg.D3)
        D = cfg.D3
    else:
        stream(SRD_C, lkv, "kv", cfg.PFPOS, D)
    poll_ge(L_KD, 8, LT, sleep=0)
    tags_setup()
    a(f"""
    s_mov_b32 s{S_PC}, s{S_U0}
    s_mul_i32 s{S_U0}, s{S_X}, {512*1152}
    s_sub_u32 s{S_T0}, s{S_I}, 18
    s_cmp_lt_u32 s{S_T0}, {NW}
    s_cbranch_scc1 L_LOADW
    s_add_u32 s{S_U3}, s{S_U0}, {128*1152}
    s_mov_b32 s{S_V1}, 0
    s_mov_b32 m0, {L_WQ}
    """)
    if cfg.GATE2:
        redepth(D, 0)
        poll_ge(L_KD, 16, LT, sleep=0)
        redepth(0, D)
    if cfg.C3:
        assert cfg.PFPOS == 16
        a(f"""
        s_lshr_b32 s{S_T1}, s{S_RI}, 1
        s_and_b32 s{S_T1}, s{S_T1}, 7
        s_cmp_eq_u32 s{S_T1}, 3
        s_cselect_b32 s{S_V1}, {NPF - (cfg.DF - cfg.DF3)}, 0
        s_cmp_ge_u32 s{S_I}, 18
        s_cselect_b32 s{S_V1}, 0, s{S_V1}
        s_cmp_lg_u32 s{S_V1}, 0
        s_cbranch_scc1 L_NOPFW
        """)
    a(f"""
    s_sub_u32 s{S_T0}, s{S_I}, {NW}
    s_cmp_lt_u32 s{S_I}, 18
    s_cselect_b32 s{S_T3}, s{S_I}, s{S_T0}
    s_mul_i32 s{S_T0}, s{S_T3}, 5
    s_min_u32 s{S_T0}, s{S_T0}, 103
    s_lshl_b32 s{S_T0}, s{S_T0}, 12
    s_add_u32 s{S_U0}, s{S_U3}, s{S_T0}
    """)
    stream(SRD_A, llin, 4096, 5, D, m0step=0)
    if cfg.RED:
        a(f"""
        s_add_u32 s{S_T3}, s{S_T3}, 11
        s_sub_u32 s{S_T0}, s{S_T3}, 23
        s_cmp_ge_u32 s{S_T3}, 23
        s_cselect_b32 s{S_T3}, s{S_T0}, s{S_T3}
        s_mul_i32 s{S_T0}, s{S_T3}, 5
        s_min_u32 s{S_T0}, s{S_T0}, 103
        s_add_u32 s{S_T0}, s{S_T0}, {5 - cfg.RED}
        s_lshl_b32 s{S_T0}, s{S_T0}, 12
        s_add_u32 s{S_U0}, s{S_U3}, s{S_T0}
        """)
        stream(SRD_A, llin, 4096, cfg.RED, D, m0step=0)
    if cfg.C3:
        a(f"""
        s_cmp_lt_u32 s{S_I}, 27
        s_cbranch_scc1 L_NOPFW
        s_cmp_ge_u32 s{S_I}, 31
        s_cbranch_scc1 L_NOPFW
        s_sub_u32 s{S_T1}, 3, s{S_X}
        s_and_b32 s{S_T1}, s{S_T1}, 7
        s_lshl_b32 s{S_T0}, s{S_T1}, 1
        s_sub_u32 s{S_T2}, s{S_I}, 27
        s_cmp_lt_u32 s{S_T2}, 2
        s_cbranch_scc1 L_PFX
        s_cmp_lg_u32 s{S_T1}, 0
        s_cbranch_scc1 L_NOPFW
        s_mov_b32 s{S_T0}, 14
        """)
        a("L_PFX:")
        a(f"""
        s_add_u32 s{S_T0}, s{S_T0}, s{S_T2}
        s_mul_i32 s{S_T0}, s{S_T0}, 5
        s_lshl_b32 s{S_T0}, s{S_T0}, 12
        s_add_u32 s{S_U0}, s{S_U3}, s{S_T0}
        """)
        stream(SRD_A, llin, 4096, 5, D, m0step=0)
        a("L_NOPFW:")
    a(f"""
    s_mov_b32 m0, {L_V + 4096*cfg.PFPOS}
    s_mov_b32 s{S_U0}, s{S_PC}
    """)
    if cfg.PFPOS < 16:
        stream(SRD_C, lkv, "kv", 16 - cfg.PFPOS, D)
    stamp(3)
    srd(SRD_C, KA_W2, 0 if cfg.QUIET else 4608 * 576 * 2)
    a(f"""
    s_cmp_ge_u32 s{S_I}, 27
    s_cbranch_scc1 L_LOADH
    s_bitcmp1_b32 s{S_I}, 0
    s_cselect_b32 s{S_T0}, s{KA_W3}, s{KA_W1}
    s_cselect_b32 s{S_T1}, s{KA_W3+1}, s{KA_W1+1}
    s_cselect_b32 s{S_T2}, s{KA_W1}, s{KA_W3}
    s_cselect_b32 s{S_T3}, s{KA_W1+1}, s{KA_W3+1}
    s_cselect_b32 s{S_PC}, 36864, 0
    s_cselect_b32 s{S_PC+1}, 0, 36864
    s_add_u32 s{S_PC}, s{S_PC}, {L_WT}
    s_add_u32 s{S_PC+1}, s{S_PC+1}, {L_WT}
    """)
    srd(SRD_A, S_T0, 0 if cfg.QUIET else 576 * 4608 * 2)
    srd(SRD_B, S_T2, 0 if cfg.QUIET else 576 * 4608 * 2)
    if cfg.GATE:
        redepth(D, 0)
        poll_ge(L_KD, 16, LT, sleep=0)
        redepth(0, cfg.DF2)
    else:
        redepth(D, cfg.DF)
        if cfg.DF3 != cfg.DF:
            a(f"""
            s_cmp_eq_u32 s{S_V1}, 0
            s_cbranch_scc1 L_NOD3
            """)
            redepth(cfg.DF, cfg.DF3)
            a("L_NOD3:")
    a(f"""
    s_lshl_b32 s{S_U0}, s{S_RI}, 6
    s_mov_b32 m0, s{S_PC}
    s_mov_b32 s{S_U1}, 0
    s_mov_b32 s{S_U2}, {1 if cfg.GATE else 0}
    """)
    if cfg.W2MID:
        a("L_FA:")
        group(SRD_A, lf, S_U0)
        a(f"""
        ds_read_b32 v{LT}, v{VZ} offset:{L_KD}
        s_add_u32 s{S_U0}, s{S_U0}, {64*9216}
        s_add_u32 m0, m0, 4096
        s_add_u32 s{S_U1}, s{S_U1}, 1
        v_add_u32 v{LP}, 4, v{LP}
        s_cmp_lg_u32 s{S_U2}, 0
        s_cbranch_scc1 L_FA2
        s_waitcnt vmcnt({cfg.DF}) lgkmcnt(0)
        ds_write_b32 v{VZ}, v{LP} offset:{L_PROG}
        v_readfirstlane_b32 s{S_T0}, v{LT}
        s_cmp_lt_u32 s{S_T0}, 16
        s_cbranch_scc1 L_FA3
        s_mov_b32 s{S_U2}, 1
        v_subrev_u32 v{LP}, {cfg.DF2-cfg.DF}, v{LP}
        v_add_u32 v{LP}, s{S_V1}, v{LP}
        s_branch L_FA3
        """)
        a("L_FA2:")
        a(f"""
        s_waitcnt vmcnt({cfg.DF2})
        ds_write_b32 v{VZ}, v{LP} offset:{L_PROG}
        """)
        a("L_FA3:")
        a(f"""
        s_cmp_lt_u32 s{S_U1}, 9
        s_cbranch_scc1 L_FA
        s_cmp_lg_u32 s{S_U2}, 0
        s_cbranch_scc1 L_FA4
        """)
        poll_ge(L_KD, 16, LT, sleep=0)
        a(f"v_subrev_u32 v{LP}, {cfg.DF2-cfg.DF}, v{LP}")
        a(f"v_add_u32 v{LP}, s{S_V1}, v{LP}")
        a("L_FA4:")
        stamp(5)
        a(f"""
        s_mul_i32 s{S_U0}, s{S_RI}, {32*1152}
        s_mov_b32 m0, {L_V}
        """)
        stream(SRD_C, la, 128, 9, cfg.DF2)
        stamp(8)
        a(f"""
        s_lshl_b32 s{S_U0}, s{S_RI}, 6
        s_mov_b32 m0, s{S_PC+1}
        """)
        stream(SRD_B, lf, 64 * 9216, 9, cfg.DF2)
        redepth(cfg.DF2, 0)
        stamp(4)
        a("s_setprio 0")
        a("s_branch L_F2")

    else:
        a("L_FA:")
        group(SRD_A, lf, S_U0)
        a(f"""
        ds_read_b32 v{LT}, v{VZ} offset:{L_KD}
        s_add_u32 s{S_U0}, s{S_U0}, {64*9216}
        s_add_u32 m0, m0, 4096
        s_add_u32 s{S_U1}, s{S_U1}, 1
        v_add_u32 v{LP}, 4, v{LP}
        s_cmp_lg_u32 s{S_U1}, 9
        s_cbranch_scc1 L_FA1
        s_mov_b32 s{SRD_A}, s{SRD_B}
        s_mov_b32 s{SRD_A+1}, s{SRD_B+1}
        s_lshl_b32 s{S_U0}, s{S_RI}, 6
        s_mov_b32 m0, s{S_PC+1}
        """)
        stamp(5)
        a("L_FA1:")
        a(f"""
        s_cmp_lg_u32 s{S_U2}, 0
        s_cbranch_scc1 L_FA2
        s_cmp_eq_u32 s{S_V1}, 0
        s_cbranch_scc1 L_FA5
        s_waitcnt vmcnt({cfg.DF3})
        """)
        a("L_FA5:")
        a(f"""
        s_waitcnt vmcnt({cfg.DF}) lgkmcnt(0)
        ds_write_b32 v{VZ}, v{LP} offset:{L_PROG}
        v_readfirstlane_b32 s{S_T0}, v{LT}
        s_cmp_lt_u32 s{S_T0}, 16
        s_cbranch_scc1 L_FA3
        s_mov_b32 s{S_U2}, 1
        v_subrev_u32 v{LP}, {cfg.DF2-cfg.DF}, v{LP}
        v_add_u32 v{LP}, s{S_V1}, v{LP}
        s_branch L_FA3
        """)
        a("L_FA2:")
        a(f"""
        s_waitcnt vmcnt({cfg.DF2})
        ds_write_b32 v{VZ}, v{LP} offset:{L_PROG}
        """)
        a("L_FA3:")
        a(f"""
        s_cmp_lt_u32 s{S_U1}, 18
        s_cbranch_scc1 L_FA
        s_cmp_lg_u32 s{S_U2}, 0
        s_cbranch_scc1 L_FA4
        """)
        poll_ge(L_KD, 16, LT, sleep=0)
        a(f"v_subrev_u32 v{LP}, {cfg.DF2-cfg.DF}, v{LP}")
        a(f"v_add_u32 v{LP}, s{S_V1}, v{LP}")
        a("L_FA4:")
        stamp(8)
        a(f"""
        s_mul_i32 s{S_U0}, s{S_RI}, {32*1152}
        s_mov_b32 m0, {L_V}
        """)
        NG1 = (cfg.DF2 + 3) // 4
        assert NG1 <= 9
        stream(SRD_C, la, 128, NG1, cfg.DF2)
        for g in range(9 - NG1):
            group(SRD_C, la, S_U0)
            a(f"""
            s_add_u32 m0, m0, 4096
            s_add_u32 s{S_U0}, s{S_U0}, 128
            """)
        stamp(4)
        a(f"""
        v_mov_b32 v{LP}, {BIAS + P_R0 + NPF + 108}
        s_waitcnt vmcnt(0)
        ds_write_b32 v{VZ}, v{LP} offset:{L_PROG}
        s_setprio 0
        """)
        stamp(0)
        if cfg.HYB:
            h_pre(S_CB, S_C2)
            x_unpack()
            h_direct("L_F2")
        a("s_branch L_F2")

    a("L_LOADH:")
    NHG = 33
    a(f"""
    s_sub_u32 s{S_T0}, s{S_I}, 27
    s_mul_i32 s{S_T0}, s{S_T0}, {NHG}
    s_min_u32 s{S_T0}, s{S_T0}, {162-NHG}
    s_lshl_b32 s{S_T0}, s{S_T0}, 12
    s_mul_i32 s{S_U0}, s{S_X}, {576*1152}
    s_add_u32 s{S_U0}, s{S_U0}, s{S_T0}
    s_mov_b32 m0, {L_WQ}
    """)
    HG = cfg.GATE or cfg.HDELAY
    if HG:
        redepth(D, 0)
    else:
        stream(SRD_C, llin, 4096, D // 4, D, m0step=0)
    poll_ge(L_KD, 16, LT, sleep=0)
    for _ in range(max(0, cfg.HDELAY - 1)):
        a("s_sleep 8")
    a(f"s_mov_b32 s{S_U1}, {NHG - (0 if HG else D//4)}")
    a("L_HB:")
    group(SRD_C, llin, S_U0)
    a(f"""
    s_add_u32 s{S_U0}, s{S_U0}, 4096
    s_waitcnt vmcnt({cfg.DL})
    s_sub_u32 s{S_U1}, s{S_U1}, 1
    s_cmp_lg_u32 s{S_U1}, 0
    s_cbranch_scc1 L_HB
    s_waitcnt vmcnt(0)
    """)
    stamp(0)
    a("s_waitcnt lgkmcnt(0)")
    endpgm()

    a("L_LOADW:")
    a(f"""
    s_lshl_b32 s{S_T0}, s{S_RI}, 7
    s_add_u32 s{S_U0}, s{S_U0}, s{S_T0}
    s_mov_b32 m0, {L_WT}
    """)
    DW = cfg.DW or D
    if cfg.DW:
        assert cfg.PFPOS == 16
        redepth(D, DW)
    stream(SRD_A, la, 32 * 1152, 4, DW)
    a(f"""
    s_mov_b32 s{S_PC+1}, s{S_U0}
    s_mov_b32 m0, {L_V + 4096*cfg.PFPOS}
    s_mov_b32 s{S_U0}, s{S_PC}
    """)
    if cfg.PFPOS < 16:
        stream(SRD_C, lkv, "kv", 16 - cfg.PFPOS, D)
    stamp(3)
    a(f"""
    s_mov_b32 m0, {L_WT + 4*4096}
    s_mov_b32 s{S_U0}, s{S_PC+1}
    """)
    stream(SRD_A, la, 32 * 1152, 12, DW)
    redepth(DW, 0)
    stamp(0)
    a("s_waitcnt lgkmcnt(0)")
    endpgm()

    A_QA, A_HD, A_PA, A_PW, A_VA, A_PUB, A_OS, A_H32 = VA, VA + 1, VA + 2, VA + 3, VA + 4, VA + 5, VA + 6, VA + 7
    a("L_COMP:")
    lane_setup()
    role_idx()
    a("s_waitcnt lgkmcnt(0)")
    srd(SRD_WS, KA_WS, WS_SIZE)
    a(f"""
    s_load_dword s{S_EP}, {sr(KA_WS,2)}, {WS_EPOCH}
    s_cmp_lg_u32 s{S_WAVE}, 7
    s_cbranch_scc1 L_NOTOUCH
    v_lshlrev_b32 v{VD}, 7, v0
    v_and_b32 v{VD+1}, 0x1ff, v{VD}
    s_lshr_b32 s{S_T0}, s{S_I}, 4
    s_lshl_b32 s{S_T0}, s{S_T0}, 16
    s_lshl_b32 s{S_T1}, s{S_X}, 13
    s_add_u32 s{S_T0}, s{S_T0}, s{S_T1}
    s_and_b32 s{S_T1}, s{S_I}, 15
    s_lshl_b32 s{S_T1}, s{S_T1}, 9
    s_add_u32 s{S_T0}, s{S_T0}, s{S_T1}
    s_add_u32 s{S_T0}, s{S_T0}, {WS_QP + WS_LOC}
    buffer_load_dword v{VD+4}, v{VD+1}, {sr(SRD_WS,4)}, s{S_T0} offen
    v_and_b32 v{VD+2}, 0x3ff, v{VD}
    s_lshl_b32 s{S_T0}, s{S_X}, 15
    s_lshl_b32 s{S_T1}, s{S_I}, 10
    s_add_u32 s{S_T0}, s{S_T0}, s{S_T1}
    s_add_u32 s{S_T0}, s{S_T0}, {WS_OP + WS_LOC}
    buffer_load_dword v{VD+5}, v{VD+2}, {sr(SRD_WS,4)}, s{S_T0} offen
    s_lshl_b32 s{S_T0}, s{S_X}, 10
    s_add_u32 s{S_T0}, s{S_T0}, {WS_ST + WS_LOC}
    buffer_load_dword v{VD+6}, v{VD+2}, {sr(SRD_WS,4)}, s{S_T0} offen
    v_and_b32 v{VD+3}, 0xff, v{VD}
    s_lshl_b32 s{S_T0}, s{S_X}, 13
    s_lshl_b32 s{S_T1}, s{S_I}, 8
    s_add_u32 s{S_T0}, s{S_T0}, s{S_T1}
    s_add_u32 s{S_T0}, s{S_T0}, {WS_HB + WS_LOC}
    buffer_load_dword v{VD+7}, v{VD+3}, {sr(SRD_WS,4)}, s{S_T0} offen
    """)
    a("L_NOTOUCH:")
    a("s_barrier")
    if cfg.HOPS:
        a("s_mov_b64 exec, 0")
        for r in range(8):
            a(f"""
            s_cmp_eq_u32 s{S_WAVE}, {r}
            s_cbranch_scc1 HOPR_{r}
            """)
        a("L_RESUME:")
        a("s_mov_b64 exec, -1")
    a("s_waitcnt lgkmcnt(0)")
    tags_setup()
    stamp(0)
    a(f"""
    s_cmp_ge_u32 s{S_WAVE}, 4
    s_cbranch_scc1 L_NOQ
    s_lshl_b32 s{S_T0}, s{S_WAVE}, 5
    v_xor_b32 v{VTMP+4}, s{S_T0}, v{VTR}
    v_add_u32 v{VTMP+4}, {L_WQ}, v{VTMP+4}
    v_lshrrev_b32 v{VTMP+1}, 2, v0
    v_lshlrev_b32 v{VTMP+5}, 7, v{VTMP+1}
    v_bfe_u32 v{VTMP+2}, v0, 3, 1
    v_bfe_u32 v{VTMP+3}, v0, 5, 1
    v_lshl_or_b32 v{VTMP+2}, v{VTMP+3}, 1, v{VTMP+2}
    v_lshlrev_b32 v{VTMP+2}, 5, v{VTMP+2}
    v_xor_b32 v{VTMP+2}, s{S_T0}, v{VTMP+2}
    v_and_b32 v{VTMP+3}, 3, v0
    v_lshl_or_b32 v{VTMP+2}, v{VTMP+3}, 3, v{VTMP+2}
    v_add_u32 v{VTMP+5}, v{VTMP+5}, v{VTMP+2}
    v_add_u32 v{VTMP+5}, {L_WQ + 128*128}, v{VTMP+5}
    s_lshr_b32 s{S_T1}, s{S_I}, 3
    s_mul_i32 s{S_T1}, s{S_T1}, 288
    v_mul_u32_u24 v{VTMP+6}, 1152, v{VJ1}
    v_add3_u32 v{VTMP+6}, v{VTMP+6}, v{VG16}, s{S_T1}
    v_add_u32 v{VTMP+6}, {L_XN}, v{VTMP+6}
    v_lshrrev_b32 v{VTMP+7}, 1, v{VG16}
    v_sub_u32 v{VTMP+7}, v{VTMP+6}, v{VTMP+7}
    v_lshl_add_u32 v{A_PUB}, v{VJ1}, 16, v{VG16}
    s_lshl_b32 s{S_U0}, s{S_X}, 1
    s_lshr_b32 s{S_T1}, s{S_S}, 2
    s_add_u32 s{S_U0}, s{S_U0}, s{S_T1}
    s_lshl_b32 s{S_U0}, s{S_U0}, 2
    s_lshr_b32 s{S_T1}, s{S_I}, 3
    s_add_u32 s{S_U0}, s{S_U0}, s{S_T1}
    s_lshl_b32 s{S_U0}, s{S_U0}, 10
    s_and_b32 s{S_T1}, s{S_S}, 3
    s_lshl_b32 s{S_T1}, s{S_T1}, 8
    s_add_u32 s{S_U0}, s{S_U0}, s{S_T1}
    s_lshl_b32 s{S_T1}, s{S_WAVE}, 6
    s_add_u32 s{S_U0}, s{S_U0}, s{S_T1}
    s_add_u32 s{S_U0}, s{S_U0}, {WS_QP}
    """)
    poll_ge(L_PROG, BIAS + cfg._pwq, VTMP, sleep=0)
    a(f"ds_read_b64_tr_b16 {vr(VW+16,2)}, v{VTMP+5}")
    for ks in range(4):
        a(f"ds_read_b64_tr_b16 {vr(VW+ks*4,2)}, v{VTMP+4} offset:{ks*4096}")
        a(f"ds_read_b64_tr_b16 {vr(VW+ks*4+2,2)}, v{VTMP+4} offset:{ks*4096+512}")
    poll_ge(L_XNF, 1, VTMP, sleep=0)
    a(f"ds_read_b64 {vr(VB+16,2)}, v{VTMP+7} offset:256")
    for ks in range(4):
        a(f"ds_read_b128 {vr(VB+ks*4,4)}, v{VTMP+6} offset:{ks*64}")
    a(f"""
    s_waitcnt lgkmcnt(4)
    v_mfma_f32_16x16x16_bf16 {vr(VD+4,4)}, {vr(VW+16,2)}, {vr(VB+16,2)}, 0
    """)
    for ks in range(4):
        c = "0" if ks == 0 else vr(VD, 4)
        a(f"s_waitcnt lgkmcnt({3-ks})")
        a(f"v_mfma_f32_16x16x32_bf16 {vr(VD,4)}, {vr(VW+ks*4,4)}, {vr(VB+ks*4,4)}, {c}")
    a(f"""
    s_mov_b64 exec, {sr(S_M8,2)}
    s_nop 6
    """)
    for k in range(4):
        a(f"v_add_f32 v{VD+k}, v{VD+k}, v{VD+4+k}")
    tag4(VD)
    pub(VD, A_PUB, S_U0)
    a("s_mov_b64 exec, -1")
    stamp(1)
    a("L_NOQ:")
    a(f"""
    s_cmp_ge_u32 s{S_I}, 27
    s_cbranch_scc1 L_SETUPD
    s_cmp_ge_u32 s{S_I}, 18
    s_cbranch_scc1 L_SETUPW
    v_bfe_u32 v{R_F1}, v0, 2, 2
    v_lshrrev_b32 v{VTMP+2}, 1, v{VG16}
    v_add_u32 v{R_F1}, v{R_F1}, v{VTMP+2}
    v_lshlrev_b32 v{R_F1}, 6, v{R_F1}
    v_bfe_u32 v{VTMP+2}, v0, 4, 1
    v_lshlrev_b32 v{VTMP+2}, 5, v{VTMP+2}
    s_bfe_u32 s{S_T1}, s{S_WAVE}, 0x10001
    s_lshl_b32 s{S_T2}, s{S_T1}, 5
    v_xor_b32 v{VTMP+2}, s{S_T2}, v{VTMP+2}
    v_and_b32 v{VTMP+3}, 3, v0
    v_lshl_or_b32 v{VTMP+2}, v{VTMP+3}, 3, v{VTMP+2}
    s_and_b32 s{S_T2}, s{S_WAVE}, 1
    s_mul_i32 s{S_U0}, s{S_T2}, 36864
    s_lshr_b32 s{S_T3}, s{S_WAVE}, 2
    s_mul_i32 s{S_U1}, s{S_T3}, {288*64}
    s_add_u32 s{S_U0}, s{S_U0}, s{S_U1}
    s_add_u32 s{S_U0}, s{S_U0}, {L_WT}
    v_add3_u32 v{R_F1}, v{R_F1}, v{VTMP+2}, s{S_U0}
    v_mul_u32_u24 v{R_F2}, 1152, v{VJ1}
    v_add_u32 v{R_F2}, {L_XN}, v{R_F2}
    v_mov_b32 v{VTMP+2}, {L_ONES}
    v_and_b32 v{VTMP+3}, 2, v0
    v_cmp_ne_u32 vcc, 0, v{VTMP+3}
    s_mul_i32 s{S_U1}, s{S_T3}, 576
    s_lshl_b32 s{S_T2}, s{S_T2}, 1
    v_cndmask_b32 v{R_F2}, v{R_F2}, v{VTMP+2}, vcc
    v_add3_u32 v{R_F2}, v{R_F2}, v{VG16}, s{S_U1}
    s_add_u32 s{S_T2}, s{S_T2}, s{S_T3}
    s_mul_i32 s{S_T2}, s{S_T2}, 384
    s_lshl_b32 s{S_T1}, s{S_T1}, 6
    s_add_u32 s{S_T2}, s{S_T2}, s{S_T1}
    v_and_b32 v{VTMP+3}, 3, v0
    v_lshl_add_u32 v{R_F3}, v{VTMP+3}, 7, v{VG16}
    v_add_u32 v{R_F3}, s{S_T2}, v{R_F3}
    """)
    f2_pre()
    a("s_branch L_SETUPD")
    a("L_SETUPW:")
    a(f"""
    s_lshl_b32 s{S_T1}, s{S_WAVE}, 8
    s_add_u32 s{S_T1}, s{S_T1}, {L_O}
    """)
    cb_baddr(128, S_T1)
    a(f"""
    v_lshrrev_b32 v{R_HL}, 5, v0
    v_lshlrev_b32 v{R_HL}, 7, v{R_HL}
    v_and_b32 v{VTMP+1}, 15, v0
    v_lshl_add_u32 v{R_HL}, v{VTMP+1}, 3, v{R_HL}
    v_bfe_u32 v{VTMP+1}, v0, 4, 1
    v_lshl_add_u32 v{R_HL}, v{VTMP+1}, 2, v{R_HL}
    v_add_u32 v{R_HL}, s{S_T1}, v{R_HL}
    v_bfe_u32 v{R_XL}, v0, 1, 2
    v_lshl_add_u32 v{R_XL}, v{R_XL}, 6, v{VG16}
    v_lshl_add_u32 v{R_XL}, v{VJ1}, 8, v{R_XL}
    s_lshl_b32 s{S_T1}, s{S_WAVE}, 9
    s_add_u32 s{S_T1}, s{S_T1}, {L_ACCW}
    v_add_u32 v{R_XL}, s{S_T1}, v{R_XL}
    s_lshr_b32 s{S_T1}, s{S_WAVE}, 1
    s_lshl_b32 s{S_T1}, s{S_T1}, 6
    v_lshrrev_b32 v{R_XL+1}, 2, v{VG16}
    v_add_u32 v{R_XL+1}, s{S_T1}, v{R_XL+1}
    s_lshl_b32 s{S_T1}, s{S_WAVE}, 13
    s_add_u32 s{S_T1}, s{S_T1}, {L_WT}
    """)
    cb_aaddr(S_T1)
    gr_pre(S_CB)
    gr_zaddr(S_C2)
    a(f"""
    s_lshl_b32 s{S_PC+1}, s{S_X}, 3
    s_add_u32 s{S_PC+1}, s{S_PC+1}, s{S_WAVE}
    s_lshl_b32 s{S_PC+1}, s{S_PC+1}, 12
    s_add_u32 s{S_PC+1}, s{S_PC+1}, {WS_OP}
    s_add_u32 s{S_PC}, s{S_PC+1}, {WS_LOC}
    s_lshl_b32 s{S_C1}, s{S_WAVE}, 3
    s_add_u32 s{S_C1}, s{S_C1}, {BIAS + P_R0 + 8}
    """)
    if cfg.YTOUCH:
        a(f"""
        s_cmp_lg_u32 s{S_WAVE}, 0
        s_cbranch_scc1 L_SETUPD
        v_and_b32 v{VTMP+1}, 31, v0
        v_lshlrev_b32 v{VTMP+1}, 7, v{VTMP+1}
        s_lshl_b32 s{S_T0}, s{S_RI}, 12
        s_add_u32 s{S_T0}, s{S_T0}, {WS_YP}
        buffer_load_dword v{VD+8}, v{VTMP+1}, {sr(SRD_WS,4)}, s{S_T0} offen sc1
        """)
    a("L_SETUPD:")
    a(f"""
    v_and_b32 v{VTMP+1}, 15, v0
    v_lshlrev_b32 v{VTMP+2}, 8, v{VTMP+1}
    v_and_b32 v{VTMP+1}, 7, v0
    v_lshlrev_b32 v{VTMP+1}, 5, v{VTMP+1}
    v_xor_b32 v{VTMP+1}, v{VTMP+1}, v{VG16}
    s_lshl_b32 s{S_T1}, s{S_WAVE}, 13
    s_add_u32 s{S_T1}, s{S_T1}, {L_K}
    v_add_u32 v{VTMP+2}, s{S_T1}, v{VTMP+2}
    """)
    for t in range(4):
        a(f"v_xor_b32 v{VTMP+4+t}, {t*64}, v{VTMP+1}")
    for t in range(4):
        a(f"v_add_u32 v{VTMP+4+t}, v{VTMP+4+t}, v{VTMP+2}")
    a(f"""
    v_lshl_add_u32 v{A_QA}, v{VJ1}, 8, v{VG16}
    v_lshlrev_b32 v{A_H32}, 5, v{VJ1}
    s_lshl_b32 s{S_T1}, s{S_WAVE}, 2
    v_add_u32 v{A_HD}, s{S_T1}, v{A_H32}
    v_lshrrev_b32 v{A_PA}, 3, v{VG16}
    v_add_u32 v{A_PA}, v{A_PA}, v{VJ1}
    v_mul_u32_u24 v{A_PA}, 144, v{A_PA}
    s_lshl_b32 s{S_T1}, s{S_WAVE}, 4
    v_add_u32 v{A_PW}, s{S_T1}, v{A_PA}
    v_lshrrev_b32 v{VTMP+1}, 2, v0
    v_lshlrev_b32 v{A_VA}, 8, v{VTMP+1}
    v_and_b32 v{VTMP+1}, 7, v{VTMP+1}
    v_lshlrev_b32 v{VTMP+1}, 5, v{VTMP+1}
    s_lshl_b32 s{S_T1}, s{S_WAVE}, 5
    v_xor_b32 v{VTMP+1}, s{S_T1}, v{VTMP+1}
    v_and_b32 v{VTMP+3}, 3, v0
    v_lshl_or_b32 v{VTMP+1}, v{VTMP+3}, 3, v{VTMP+1}
    v_add_u32 v{A_VA}, v{A_VA}, v{VTMP+1}
    v_add_u32 v{A_VA}, {L_V}, v{A_VA}
    v_lshl_add_u32 v{A_PUB}, v{VJ1}, 13, v{VG16}
    s_lshl_b32 s{S_A0}, s{S_KVH}, 14
    s_lshr_b32 s{S_T1}, s{S_WAVE}, 2
    s_lshl_b32 s{S_T1}, s{S_T1}, 12
    s_add_u32 s{S_A0}, s{S_A0}, s{S_T1}
    s_and_b32 s{S_T1}, s{S_I}, 15
    s_lshl_b32 s{S_T1}, s{S_T1}, 8
    s_add_u32 s{S_A0}, s{S_A0}, s{S_T1}
    s_and_b32 s{S_T1}, s{S_WAVE}, 3
    s_lshl_b32 s{S_T1}, s{S_T1}, 6
    s_add_u32 s{S_A0}, s{S_A0}, s{S_T1}
    s_add_u32 s{S_A0}, s{S_A0}, {WS_OP + WS_LOC}
    s_lshl_b32 s{S_T1}, s{S_WAVE}, 6
    v_lshl_add_u32 v{A_OS}, v{VJ1}, 9, v{VG16}
    v_add_u32 v{A_OS}, s{S_T1}, v{A_OS}
    s_sub_u32 s{S_T1}, s{S_I}, 18
    s_cmp_lt_u32 s{S_T1}, {NW}
    s_cselect_b32 s{S_A1}, {NPFW}, {NPF}
    s_lshl_b32 s{S_T2}, s{S_WAVE}, 3
    s_add_u32 s{S_T2}, s{S_T2}, {BIAS + P_K0 + 8}
    """)
    poll_ge(L_PROG, f"s{S_T2}", VTMP, sleep=1)
    for T in range(2):
        for t in range(4):
            a(f"ds_read_b128 {vr(VW+(T*4+t)*4,4)}, v{VTMP+4+t} offset:{T*4096}")
    a(f"""
    s_mov_b32 s{S_T2}, 0x3db504f3
    s_mov_b32 s{S_T3}, 0x3fb8aa3b
    s_waitcnt vmcnt(0) lgkmcnt(0)
    s_mov_b64 exec, 1
    ds_add_u32 v{VZ}, v{VONE} offset:{L_KD}
    s_mov_b64 exec, -1
    """)
    stamp(2)
    poll_ge(L_QF, 1, VTMP, sleep=1)
    stamp(3)
    for t in range(4):
        a(f"ds_read_b128 {vr(VB+t*4,4)}, v{A_QA} offset:{L_Q+t*64}")
    for t in range(4):
        a(f"s_waitcnt lgkmcnt({3-t})")
        for T in range(2):
            c = "0" if t == 0 else vr(VD + T * 4, 4)
            a(f"v_mfma_f32_16x16x32_bf16 {vr(VD+T*4,4)}, {vr(VW+(T*4+t)*4,4)}, {vr(VB+t*4,4)}, {c}")
    a("s_nop 6")
    for k in range(0, 8, 2):
        a(f"""
        v_cvt_pk_bf16_f32 v{VTMP+4}, v{VD+k}, v{VD+k+1}
        v_lshlrev_b32 v{VD+k}, 16, v{VTMP+4}
        v_and_b32 v{VD+k+1}, 0xffff0000, v{VTMP+4}
        v_mul_f32 v{VD+k}, s{S_T2}, v{VD+k}
        v_mul_f32 v{VD+k+1}, s{S_T2}, v{VD+k+1}
        v_cvt_pk_bf16_f32 v{VTMP+4}, v{VD+k}, v{VD+k+1}
        v_lshlrev_b32 v{VD+k}, 16, v{VTMP+4}
        v_and_b32 v{VD+k+1}, 0xffff0000, v{VTMP+4}
        """)
    a(f"""
    v_max3_f32 v{VTMP+4}, v{VD}, v{VD+1}, v{VD+2}
    v_max3_f32 v{VTMP+4}, v{VTMP+4}, v{VD+3}, v{VD+4}
    v_max3_f32 v{VTMP+4}, v{VTMP+4}, v{VD+5}, v{VD+6}
    v_max_f32 v{VTMP+4}, v{VTMP+4}, v{VD+7}
    v_mov_b32 v{VTMP+5}, v{VTMP+4}
    s_nop 1
    v_permlane32_swap_b32 v{VTMP+4}, v{VTMP+5}
    v_max_f32 v{VTMP+4}, v{VTMP+4}, v{VTMP+5}
    v_mov_b32 v{VTMP+5}, v{VTMP+4}
    s_nop 1
    v_permlane16_swap_b32 v{VTMP+4}, v{VTMP+5}
    v_max_f32 v{VTMP+4}, v{VTMP+4}, v{VTMP+5}
    s_mov_b64 exec, 3
    ds_write_b32 v{A_HD}, v{VTMP+4} offset:{L_MXT}
    s_mov_b64 exec, -1
    s_mov_b32 s{S_CNT}, {cfg.TMO_L}
    """)
    a("L_MXP:")
    a(f"""
    ds_read_b128 {vr(VB,4)}, v{A_H32} offset:{L_MXT}
    ds_read_b128 {vr(VB+4,4)}, v{A_H32} offset:{L_MXT+16}
    s_sub_u32 s{S_CNT}, s{S_CNT}, 1
    s_cbranch_scc1 L_MXD
    s_waitcnt lgkmcnt(1)
    v_max3_f32 v{VTMP+4}, v{VB}, v{VB+1}, v{VB+2}
    s_waitcnt lgkmcnt(0)
    v_max3_f32 v{VTMP+5}, v{VB+3}, v{VB+4}, v{VB+5}
    v_max3_f32 v{VTMP+4}, v{VTMP+4}, v{VB+6}, v{VB+7}
    v_max_f32 v{VTMP+4}, v{VTMP+4}, v{VTMP+5}
    v_cmp_eq_u32 vcc, 0x7f800000, v{VTMP+4}
    s_cbranch_vccnz L_MXP
    """)
    a("L_MXD:")
    for k in range(8):
        a(f"v_sub_f32 v{VD+k}, v{VD+k}, v{VTMP+4}")
    for k in range(8):
        a(f"v_mul_f32 v{VD+k}, s{S_T3}, v{VD+k}")
    for k in range(8):
        a(f"v_exp_f32 v{VD+k}, v{VD+k}")
    a("s_nop 0")
    for k in range(4):
        a(f"v_cvt_pk_bf16_f32 v{VB+k}, v{VD+2*k}, v{VD+2*k+1}")
    a(f"""
    v_add_f32 v{VD}, v{VD}, v{VD+1}
    v_add_f32 v{VD+2}, v{VD+2}, v{VD+3}
    v_add_f32 v{VD+4}, v{VD+4}, v{VD+5}
    v_add_f32 v{VD+6}, v{VD+6}, v{VD+7}
    v_add_f32 v{VD}, v{VD}, v{VD+2}
    v_add_f32 v{VD+4}, v{VD+4}, v{VD+6}
    s_mov_b64 exec, {sr(S_M8,2)}
    ds_write_b128 v{A_PW}, {vr(VB,4)} offset:{L_P}
    s_mov_b64 exec, -1
    v_add_f32 v{VD}, v{VD}, v{VD+4}
    v_mov_b32 v{VD+1}, v{VD}
    s_nop 1
    v_permlane32_swap_b32 v{VD}, v{VD+1}
    v_add_f32 v{VD}, v{VD}, v{VD+1}
    v_mov_b32 v{VD+1}, v{VD}
    s_nop 1
    v_permlane16_swap_b32 v{VD}, v{VD+1}
    v_add_f32 v{VD}, v{VD}, v{VD+1}
    s_mov_b64 exec, 3
    ds_write_b32 v{A_HD}, v{VD} offset:{L_SMT}
    s_mov_b64 exec, 1
    ds_add_u32 v{VZ}, v{VONE} offset:{L_SUM+8}
    s_mov_b64 exec, -1
    """)
    poll_ge(L_SUM + 8, 8, VTMP, sleep=0)
    for u in range(8):
        a(f"ds_read_b128 {vr(VB+u*4,4)}, v{A_PA} offset:{L_P+u*16}")
    stamp(4)
    first = True
    for (u0, u1) in ((0, 4), (4, 6), (6, 7), (7, 8)):
        if 2 * u1 > cfg.PFPOS:
            a(f"s_add_u32 s{S_U1}, s{S_A1}, {BIAS + P_V0 + 8 * u1}")
            poll_ge(L_PROG, f"s{S_U1}", VTMP, sleep=(1 if u1 < 7 else 0))
        else:
            poll_ge(L_PROG, BIAS + P_V0 + 8 * u1, VTMP, sleep=1)
        for u in range(u0, u1):
            a(f"ds_read_b64_tr_b16 {vr(VW+u*4,2)}, v{A_VA} offset:{u*8192}")
            a(f"ds_read_b64_tr_b16 {vr(VW+u*4+2,2)}, v{A_VA} offset:{u*8192+4096}")
        for u in range(u0, u1):
            a(f"s_waitcnt lgkmcnt({2*(u1-1-u)})")
            c = "0" if first else vr(VD, 4)
            first = False
            a(f"v_mfma_f32_16x16x32_bf16 {vr(VD,4)}, {vr(VW+u*4,4)}, {vr(VB+u*4,4)}, {c}")
    a(f"""
    s_mov_b64 exec, {sr(S_M8,2)}
    s_nop 6
    """)
    tag4(VD)
    a(f"""
    buffer_store_dwordx4 {vr(VD,4)}, v{A_PUB}, {sr(SRD_WS,4)}, s{S_A0} offen
    ds_write_b128 v{A_OS}, {vr(VD,4)} offset:{L_OS}
    s_mov_b64 exec, 1
    ds_add_u32 v{VZ}, v{VONE} offset:{L_KD}
    s_mov_b64 exec, -1
    """)
    stamp(5)
    if cfg.STAMP == 3:
        a("s_waitcnt vmcnt(0)")
        stamp(0)
    a(f"""
    s_cmp_ge_u32 s{S_I}, 27
    s_cbranch_scc1 L_END
    s_cmp_lt_u32 s{S_I}, 18
    s_cbranch_scc1 L_COMPF
    """)
    poll_ge(L_WF, 1, VTMP, sleep=0)
    for k in range(4):
        a(f"ds_read_b32 v{R_WG+k}, v{R_XL+1} offset:{L_WGT+16*k}")
    q = VB + 16
    if cfg.OTRIG:
        poll_ge(L_PROG, BIAS + P_R0 + cfg.OTRIG, VTMP, sleep=0)
        for k in range(4):
            a(f"buffer_load_dwordx4 {vr(VB+4*k,4)}, v{R_L16}, {sr(SRD_WS,4)}, s{S_PC} offen offset:{1024*k} sc1")
    if not cfg.OFIRST:
        poll_ge(L_PROG, f"s{S_C1}", VTMP, sleep=0)
        cb_aread(2, 4096)
    else:
        poll_ge(L_PROG, BIAS + P_R0 + cfg.OFIRST, VTMP, sleep=0)
    stamp(6)
    if cfg.MG or cfg.MGO:
        for d in range(8):
            a(f"v_mov_b32 v{q+d}, 0")

    def o_valid(k, inorder):
        for d in range(4):
            op = "v_mul_f32" if inorder and k % 2 == 0 else "v_fmac_f32"
            a(f"{op} v{q+4*(k>>1)+d}, v{VB+4*k+d}, v{R_WG+k}")

    mgather(4, VB, R_L16, S_PC, o_valid, toggle=(S_PC, S_PC + 1), pre_issued=bool(cfg.OTRIG), extra=0, masked=bool(cfg.MG or cfg.MGO))
    stamp(8)
    for d in range(4):
        a(f"v_permlane32_swap_b32 v{q+d}, v{q+4+d}")
    a(f"""
    v_pk_add_f32 {vr(q,2)}, {vr(q,2)}, {vr(q+4,2)}
    v_pk_add_f32 {vr(q+2,2)}, {vr(q+2,2)}, {vr(q+6,2)}
    s_nop 1
    v_permlane16_swap_b32 v{q}, v{q+2}
    v_permlane16_swap_b32 v{q+1}, v{q+3}
    v_pk_add_f32 {vr(q,2)}, {vr(q,2)}, {vr(q+2,2)}
    v_cvt_pk_bf16_f32 v{q}, v{q}, v{q+1}
    ds_write_b32 v{R_HL}, v{q}
    """)
    if cfg.OFIRST:
        poll_ge(L_PROG, f"s{S_C1}", VTMP, sleep=0)
        cb_aread(2, 4096)
    cb_bread(2)
    cb_mfma(2)
    a(f"""
    ds_write_b128 v{R_XL}, {vr(VD,4)}
    s_mov_b64 exec, -1
    s_waitcnt lgkmcnt(0)
    """)
    stamp(7)
    a(f"""
    s_barrier
    s_cmp_lg_u32 s{S_WAVE}, 0
    s_cbranch_scc1 L_NORELAY
    """)
    h_pre(S_RI)
    a(f"""
    s_lshl_b32 s{S_U3}, s{S_X}, 13
    s_lshl_b32 s{S_T0}, s{S_RI}, 9
    s_add_u32 s{S_U3}, s{S_U3}, s{S_T0}
    s_add_u32 s{S_U3}, s{S_U3}, {WS_HB}
    """)
    x_unpack()
    if cfg.RPIPE:
        def r_ok(b):
            a(f"""
            v_pk_add_f32 {vr(HGQ,2)}, {vr(b,2)}, {vr(b+4,2)}
            v_pk_add_f32 {vr(HGQ+2,2)}, {vr(b+2,2)}, {vr(b+6,2)}
            v_pk_add_f32 {vr(HGQ,2)}, {vr(HGQ,2)}, {vr(b+8,2)}
            v_pk_add_f32 {vr(HGQ+2,2)}, {vr(HGQ+2,2)}, {vr(b+10,2)}
            v_pk_add_f32 {vr(HGQ,2)}, {vr(HGQ,2)}, {vr(b+12,2)}
            v_pk_add_f32 {vr(HGQ+2,2)}, {vr(HGQ+2,2)}, {vr(b+14,2)}
            """)
        pgather(4, [VW, VW + 16, VW + 32][:cfg.RPIPE], R_L16, S_U2, r_ok)
        h_finish()
    else:
        h_get(sleep=cfg.RSLEEP)
    stamp(0)
    a("L_NORELAY:")
    a(f"""
    s_cmp_ge_u32 s{S_R}, 36
    s_cbranch_scc1 L_END
    """)
    poll_ge(L_WF, 2, VTMP, sleep=2)
    gather_reduce(2, R_L16, S_C2, L_ACCR)
    stamp(9)
    a("s_barrier")
    endpgm()

    a("L_COMPF:")
    if cfg.HYB:
        h_pre(S_CB, S_C2)
    for k in range(36):
        a(f"v_mov_b32 v{VB+k}, 0x3f803f80")
    a(f"""
    s_xor_b32 s{S_T1}, s{S_WAVE}, s{S_I}
    s_and_b32 s{S_T1}, s{S_T1}, 1
    s_mul_i32 s{S_T1}, s{S_T1}, {72 if cfg.W2MID else 36}
    s_add_u32 s{S_U0}, s{S_T1}, {BIAS + P_R0 + NPF}
    s_cmp_ge_u32 s{S_WAVE}, 4
    s_cselect_b32 s{S_T1}, 24, 8
    s_cselect_b32 s{S_T2}, 32, 12
    s_cselect_b32 s{S_T0}, 36, 20
    s_add_u32 s{S_U1}, s{S_U0}, s{S_T1}
    s_add_u32 s{S_U2}, s{S_U0}, s{S_T2}
    s_add_u32 s{S_U3}, s{S_U0}, s{S_T0}
    s_mov_b32 s{S_V0}, 0
    s_mov_b32 s{S_CNT}, {cfg.TMO_L}
    """)
    a("L_FW:")
    a(f"""
    ds_read_b64 {vr(VTMP,2)}, v{VZ} offset:{L_PROG}
    s_sub_u32 s{S_CNT}, s{S_CNT}, 1
    s_cbranch_scc1 L_FW2
    s_waitcnt lgkmcnt(0)
    v_readfirstlane_b32 s{S_T1}, v{VTMP+1}
    v_readfirstlane_b32 s{S_T0}, v{VTMP}
    s_cmp_ge_u32 s{S_T1}, 10
    s_cbranch_scc1 L_FW2
    s_cmp_lt_u32 s{S_T0}, s{S_U3}
    s_cbranch_scc1 L_FW
    """)
    f_frags(0, 9)
    a(f"s_mov_b32 s{S_V0}, 1")
    stamp(6)
    a("L_FW3:")
    a(f"""
    ds_read_b64 {vr(VTMP,2)}, v{VZ} offset:{L_PROG}
    s_sub_u32 s{S_CNT}, s{S_CNT}, 1
    s_cbranch_scc1 L_FW2
    s_waitcnt lgkmcnt(0)
    v_readfirstlane_b32 s{S_T1}, v{VTMP+1}
    v_readfirstlane_b32 s{S_T0}, v{VTMP}
    s_cmp_ge_u32 s{S_T1}, 10
    s_cbranch_scc1 L_FW2
    s_cmp_lt_u32 s{S_T0}, {BIAS + P_R0 + NPF + 108}
    s_cbranch_scc1 L_FW3
    """)
    cb_aread(1, 0)
    a(f"s_mov_b32 s{S_V0}, 3")
    poll_ge(L_XNF, 10, VTMP, sleep=0)
    a("L_FW2:")
    stamp(8)
    if cfg.STAMP == 5:
        stamp(0)
    a(f"s_mov_b64 exec, {sr(S_M8,2)}")
    for ks in range(9):
        a(f"ds_read_b128 {vr(VB+ks*4,4)}, v{R_F2} offset:{ks*64}")
    a(f"""
    s_mov_b64 exec, -1
    s_cmp_eq_u32 s{S_V0}, 0
    s_cbranch_scc1 L_FST
    """)
    for ks in range(9):
        a(f"s_waitcnt lgkmcnt({8-ks})")
        c = "0" if ks == 0 else vr(VD, 4)
        a(f"v_mfma_f32_16x16x32_bf16 {vr(VD,4)}, {vr(VW+16+ks*4,4)}, {vr(VB+ks*4,4)}, {c}")
    a("s_branch L_F1E")
    a("L_FST:")
    for st, thr in enumerate((S_U1, S_U2, S_U3)):
        poll_ge(L_PROG, f"s{thr}", VTMP, sleep=0)
        f_frags(3 * st, 3 * st + 3)
        for k in range(3):
            ks = 3 * st + k
            a(f"s_waitcnt lgkmcnt({2*(2-k)})")
            c = "0" if ks == 0 else vr(VD, 4)
            a(f"v_mfma_f32_16x16x32_bf16 {vr(VD,4)}, {vr(VW+16+ks*4,4)}, {vr(VB+ks*4,4)}, {c}")
    stamp(6)
    a("L_F1E:")
    a(f"""
    s_mov_b32 exec_lo, 0x00070007
    s_mov_b32 exec_hi, 0x00070007
    s_nop 5
    ds_write_b128 v{R_F3}, {vr(VD,4)} offset:{L_GU}
    s_mov_b64 exec, -1
    """)
    a(f"""
    s_cmp_eq_u32 s{S_V0}, 3
    s_waitcnt lgkmcnt(0)
    s_cbranch_scc1 L_F2B
    """)
    poll_ge(L_PROG, BIAS + P_R0 + NPF + 108, VTMP, sleep=0)
    a("L_F2:")
    cb_aread(1, 0)
    a("L_F2B:")
    if cfg.STAMP == 5:
        stamp(1)
    a("s_barrier")
    if cfg.STAMP == 5:
        stamp(2)
    G = VD + 4
    a(f"""
    ds_read_b32 v{G}, v{R_G0} offset:{L_GU}
    ds_read_b32 v{G+2}, v{R_G0} offset:{L_GU+384}
    ds_read_b32 v{G+1}, v{R_G0} offset:{L_GU+768}
    ds_read_b32 v{G+3}, v{R_G0} offset:{L_GU+1152}
    ds_read_b32 v{G+4}, v{R_G1} offset:{L_GU+256}
    ds_read_b32 v{G+6}, v{R_G1} offset:{L_GU+384+256}
    ds_read_b32 v{G+5}, v{R_G1} offset:{L_GU+768+256}
    ds_read_b32 v{G+7}, v{R_G1} offset:{L_GU+1152+256}
    ds_read_b64 {vr(G+8,2)}, v{R_LS} offset:{L_LNS}
    s_waitcnt lgkmcnt(5)
    v_pk_add_f32 {vr(G,2)}, {vr(G,2)}, {vr(G+2,2)}
    s_waitcnt lgkmcnt(1)
    v_pk_add_f32 {vr(G+4,2)}, {vr(G+4,2)}, {vr(G+6,2)}
    s_waitcnt lgkmcnt(0)
    """)
    a(f"""
    v_fmac_f32 v{G}, v{G+4}, v{G+8}
    v_fmac_f32 v{G+1}, v{G+5}, v{G+8}
    v_mul_f32 v{G}, v{G}, v{G+9}
    v_mul_f32 v{G+1}, v{G+1}, v{G+9}
    v_cvt_pk_bf16_f32 v{G}, v{G}, v{G+1}
    v_lshlrev_b32 v{G+2}, 16, v{G}
    v_and_b32 v{G+4}, 0xffff0000, v{G}
    v_mul_f32 v{G+1}, 0xbfb8aa3b, v{G+2}
    v_exp_f32 v{G+1}, v{G+1}
    s_nop 0
    v_add_f32 v{G+1}, 1.0, v{G+1}
    v_rcp_f32 v{G+1}, v{G+1}
    s_nop 0
    v_mul_f32 v{G+1}, v{G+2}, v{G+1}
    """)
    bf16r(G + 1, G + 1)
    a(f"""
    v_mul_f32 v{G+1}, v{G+1}, v{G+4}
    v_cvt_pk_bf16_f32 v{G+1}, v{G+1}, v{G+1}
    ds_write_b16 v{R_HW}, v{G+1}
    """)
    if cfg.STAMP == 5:
        stamp(3)
    cb_bread(1)
    cb_mfma(1)
    tag4(VD)
    a(f"""
    buffer_store_dwordx4 {vr(VD,4)}, v{R_ST}, {sr(SRD_WS,4)}, s{S_C1} offen sc1
    s_mov_b64 exec, -1
    """)
    stamp(7)
    endpgm()

    C = VA
    a("L_COMM:")
    a("s_setprio 2")
    a(f"""
    v_lshrrev_b32 v{C+2}, 5, v0
    v_mul_u32_u24 v{C+2}, 1152, v{C+2}
    v_and_b32 v{C+3}, 31, v0
    v_lshl_add_u32 v{C+2}, v{C+3}, 2, v{C+2}
    s_lshr_b32 s{S_U3}, s{S_I}, 3
    s_mul_i32 s{S_U3}, s{S_U3}, 288
    v_lshlrev_b32 v{C}, 2, v0
    v_mov_b32 v{C+1}, 0x7f800000
    v_mov_b32 v{C+3}, 0x3f803f80
    s_waitcnt lgkmcnt(0)
    """)
    srd(SRD_A, KA_X, 2304)

    def xloads():
        for k in range(9):
            a(f"buffer_load_dword v{VB+k}, v{C+2}, {sr(SRD_A,4)}, 0 offen offset:{128*k}")
        for k in range(3):
            a(f"buffer_load_dword v{VB+9+k}, v{C+2}, {sr(SRD_A,4)}, s{S_U3} offen offset:{128*k}")

    if cfg.XS:
        pass
    else:
        xloads()
    a(f"""
    ds_write_b32 v{C}, v{VZ}
    ds_write_b32 v{C}, v{VZ} offset:256
    s_mov_b64 exec, 0xffff
    ds_write_b32 v{C}, v{C+1} offset:{L_MXT}
    s_mov_b64 exec, -1
    """)
    srd(SRD_WS, KA_WS, WS_SIZE)
    a(f"""
    """)
    a(f"""
    s_waitcnt lgkmcnt(0)
    """)
    if cfg.XS:
        for k in range(18):
            a(f"s_load_dword s77, {sr(KA_X,2)}, {128*k}")
    a(f"""
    s_barrier
    s_load_dword s{S_EP}, {sr(KA_WS,2)}, {WS_EPOCH}
    """)
    if cfg.XS:
        a("s_waitcnt lgkmcnt(0)")
        xloads()
    for k in range(5):
        a(f"ds_write_b32 v{C}, v{C+3} offset:{L_ONES+256*k}")
    role_idx()
    VXS = VD + 12
    a(f"""
    s_lshl_b32 s{S_U0}, s{S_R}, 6
    s_min_u32 s{S_U0}, s{S_U0}, 0x10000
    v_lshlrev_b32 v{C+4}, 1, v0
    buffer_load_ushort v{VXS}, v{C+4}, {sr(SRD_A,4)}, s{S_U0} offen
    v_add_u32 v{C+5}, s{S_U3}, v{C+2}
    """)
    lane_setup()
    a("s_waitcnt vmcnt(4)")
    vs, vq, vt = VTMP, VTMP + 1, VTMP + 2
    for k in range(9):
        a(f"""
        v_lshlrev_b32 v{VW+2*k}, 16, v{VB+k}
        v_and_b32 v{VW+2*k+1}, 0xffff0000, v{VB+k}
        """)
    a(f"v_pk_add_f32 {vr(VTMP+4,2)}, {vr(VW,2)}, {vr(VW+2,2)}")
    for k in range(2, 9):
        a(f"v_pk_add_f32 {vr(VTMP+4,2)}, {vr(VTMP+4,2)}, {vr(VW+2*k,2)}")
    a(f"v_add_f32 v{vs}, v{VTMP+4}, v{VTMP+5}")
    half_reduce(vs, vt)
    a(f"v_mul_f32 v{vs}, {hex(f2u(1.0/576))}, v{vs}")
    for k in range(18):
        a(f"v_sub_f32 v{VW+k}, v{VW+k}, v{vs}")
    a(f"v_pk_mul_f32 {vr(VTMP+4,2)}, {vr(VW,2)}, {vr(VW,2)}")
    for k in range(1, 9):
        a(f"v_pk_fma_f32 {vr(VTMP+4,2)}, {vr(VW+2*k,2)}, {vr(VW+2*k,2)}, {vr(VTMP+4,2)}")
    a(f"v_add_f32 v{vq}, v{VTMP+4}, v{VTMP+5}")
    half_reduce(vq, vt)
    a(f"v_mul_f32 v{vq}, {hex(f2u(1.0/576))}, v{vq}")
    ln_tail(vs, vq, vt)
    a("s_waitcnt vmcnt(1)")
    for k in range(3):
        x0, x1, p = VW + 2 * k, VW + 2 * k + 1, VB + 9 + k
        a(f"""
        v_lshlrev_b32 v{x0}, 16, v{p}
        v_and_b32 v{x1}, 0xffff0000, v{p}
        v_add_f32 v{x0}, v{x0}, v{vs}
        v_add_f32 v{x1}, v{x1}, v{vs}
        v_cvt_pk_bf16_f32 v{p}, v{x0}, v{x1}
        v_lshlrev_b32 v{x0}, 16, v{p}
        v_and_b32 v{x1}, 0xffff0000, v{p}
        v_mul_f32 v{x0}, v{x0}, v{vq}
        v_mul_f32 v{x1}, v{x1}, v{vq}
        v_cvt_pk_bf16_f32 v{p}, v{x0}, v{x1}
        """)
    a(f"""
    ds_write_b32 v{C+5}, v{VB+9} offset:{L_XN}
    ds_write_b32 v{C+5}, v{VB+10} offset:{L_XN+128}
    s_mov_b32 exec_lo, 0xff
    s_mov_b32 exec_hi, 0xff
    ds_write_b32 v{C+5}, v{VB+11} offset:{L_XN+256}
    s_mov_b64 exec, -1
    ds_write_b32 v{VZ}, v{VONE} offset:{L_XNF}
    s_waitcnt vmcnt(0) lgkmcnt(0)
    """)
    tags_setup()
    stamp(0)
    if cfg.MOVEC:
        a("s_branch L_COMM2")
        a("; MOVE_END")
        a("L_COMM2:")
    if cfg.DIAG:
        a(f"""
        v_mov_b32 v{VB+20}, s76
        s_lshl_b32 s{S_T0}, s{S_WG}, 2
        s_add_u32 s{S_T0}, s{S_T0}, {WS_DBG}
        s_mov_b64 exec, 1
        buffer_store_dword v{VB+20}, v{VZ}, {sr(SRD_WS,4)}, s{S_T0} offen sc1
        s_mov_b64 exec, -1
        """)
    a(f"""
    v_lshlrev_b32 v{VXS}, 16, v{VXS}
    s_lshl_b32 s{S_U0}, s{S_B}, 4
    s_add_u32 s{S_U0}, s{S_U0}, s{S_KVH}
    s_lshl_b32 s{S_U0}, s{S_U0}, 12
    s_add_u32 s{S_U0}, s{S_U0}, {WS_QP}
    s_add_u32 s{S_U1}, s{S_U0}, {WS_LOC}
    v_lshlrev_b32 v{C+6}, 3, v0
    """)
    poll_ge(L_PROG, BIAS + P_K0 + cfg.QTRIG, VTMP, sleep=2)
    a(f"s_mov_b32 s{S_CNT}, {cfg.TMO_G}")
    a("L_QG:")
    for k in range(4):
        a(f"buffer_load_dwordx4 {vr(VW+4*k,4)}, v{R_L16}, {sr(SRD_WS,4)}, s{S_U1} offen offset:{1024*k} sc1")
    for k in range(4):
        a(f"s_waitcnt vmcnt({3-k})")
        chk4(VTMP + 1, VW + 4 * k, k == 0)
    chk_end(VTMP + 1, "L_QG", "L_QGD", toggle=(S_U1, S_U0), tmask=3)
    for d in range(0, 4, 2):
        a(f"""
        v_pk_add_f32 {vr(VB+d,2)}, {vr(VW+d,2)}, {vr(VW+4+d,2)}
        v_pk_add_f32 {vr(VB+4+d,2)}, {vr(VW+8+d,2)}, {vr(VW+12+d,2)}
        v_pk_add_f32 {vr(VB+d,2)}, {vr(VB+d,2)}, {vr(VB+4+d,2)}
        """)
    a(f"""
    v_cvt_pk_bf16_f32 v{VB}, v{VB}, v{VB+1}
    v_cvt_pk_bf16_f32 v{VB+1}, v{VB+2}, v{VB+3}
    ds_write_b64 v{C+6}, {vr(VB,2)} offset:{L_Q}
    ds_write_b32 v{VZ}, v{VONE} offset:{L_QF}
    """)
    stamp(1)
    a(f"""
    v_lshlrev_b32 v{C+5}, 5, v{VJ1}
    v_lshlrev_b32 v{C+6}, 8, v{VJ1}
    s_lshl_b32 s{S_U0}, s{S_KVH}, 9
    s_and_b32 s{S_T1}, s{S_I}, 15
    s_lshl_b32 s{S_T1}, s{S_T1}, 4
    s_add_u32 s{S_U0}, s{S_U0}, s{S_T1}
    s_add_u32 s{S_U0}, s{S_U0}, {WS_ST}
    v_lshrrev_b32 v{C+7}, 5, v0
    v_lshlrev_b32 v{C+7}, 13, v{C+7}
    v_bfe_u32 v{C+4}, v0, 4, 1
    v_lshl_add_u32 v{C+7}, v{C+4}, 12, v{C+7}
    v_and_b32 v{C+4}, 15, v0
    v_lshl_add_u32 v{C+7}, v{C+4}, 4, v{C+7}
    s_lshl_b32 s{S_A0}, s{S_KVH}, 14
    s_and_b32 s{S_T1}, s{S_I}, 15
    s_lshl_b32 s{S_T1}, s{S_T1}, 8
    s_add_u32 s{S_A0}, s{S_A0}, s{S_T1}
    s_add_u32 s{S_A0}, s{S_A0}, {WS_OP}
    """)
    poll_ge(L_SUM + 8, 8, VTMP, sleep=1)
    a(f"""
    ds_read_b128 {vr(VW,4)}, v{C+5} offset:{L_MXT}
    ds_read_b128 {vr(VW+4,4)}, v{C+5} offset:{L_MXT+16}
    ds_read_b128 {vr(VW+8,4)}, v{C+5} offset:{L_SMT}
    ds_read_b128 {vr(VW+12,4)}, v{C+5} offset:{L_SMT+16}
    s_waitcnt lgkmcnt(0)
    v_max3_f32 v{VB}, v{VW}, v{VW+1}, v{VW+2}
    v_max3_f32 v{VB}, v{VB}, v{VW+3}, v{VW+4}
    v_max3_f32 v{VB}, v{VB}, v{VW+5}, v{VW+6}
    v_max_f32 v{VB}, v{VB}, v{VW+7}
    v_pk_add_f32 {vr(VW+8,2)}, {vr(VW+8,2)}, {vr(VW+10,2)}
    v_pk_add_f32 {vr(VW+12,2)}, {vr(VW+12,2)}, {vr(VW+14,2)}
    v_pk_add_f32 {vr(VW+8,2)}, {vr(VW+8,2)}, {vr(VW+12,2)}
    v_add_f32 v{VB+1}, v{VW+8}, v{VW+9}
    v_mov_b32 v{VB+2}, v{VB}
    v_mov_b32 v{VB+3}, v{VB+1}
    """)
    tag4(VB)
    a("s_mov_b64 exec, 3")
    pub(VB, C + 6, S_U0)
    a("s_mov_b64 exec, -1")
    stamp(2)

    def ocopy():
        poll_ge(L_KD, 16, VTMP, sleep=2)
        a(f"""
        ds_read_b128 {vr(VB+4,4)}, v{R_L16} offset:{L_OS}
        s_waitcnt lgkmcnt(0)
        buffer_store_dwordx4 {vr(VB+4,4)}, v{C+7}, {sr(SRD_WS,4)}, s{S_A0} offen sc1
        """)

    a(f"""
    s_sub_u32 s{S_T1}, s{S_I}, 18
    s_cmp_lt_u32 s{S_T1}, {NW}
    s_cbranch_scc1 L_COMMW
    """)
    ocopy()
    a(f"""
    s_cmp_ge_u32 s{S_I}, 27
    s_cbranch_scc1 L_END
    """)
    a(f"""
    s_mov_b32 s{S_U2}, 0x3f803f80
    v_bfe_u32 v{R_LS}, v0, 4, 1
    v_mul_u32_u24 v{C+2}, 1152, v{R_LS}
    v_lshlrev_b32 v{R_LS}, 3, v{R_LS}
    v_lshrrev_b32 v{C+3}, 5, v0
    v_lshl_add_u32 v{C+2}, v{C+3}, 7, v{C+2}
    v_and_b32 v{C+3}, 15, v0
    v_lshl_add_u32 v{C+2}, v{C+3}, 3, v{C+2}
    v_mov_b32 v{C+6}, 16
    s_lshl_b32 s{S_U1}, s{S_X}, 13
    s_add_u32 s{S_U1}, s{S_U1}, {WS_HB}
    s_add_u32 s{S_U0}, s{S_U1}, {WS_LOC}
    v_mov_b32 v{VW+16}, 0
    v_mov_b32 v{VW+17}, 0
    v_mov_b32 v{VW+18}, s{S_TAGF}
    v_mov_b32 v{VW+19}, s{S_TAGF}
    v_add_u32 v{C+3}, 4096, v{R_L16}
    """)
    poll_ge(L_PROG, BIAS + P_R0 + NPF + cfg.HTRIG, VTMP, sleep=4)
    a(f"s_mov_b32 s{S_CNT}, {cfg.TMO_G}")
    def hissue(b):
        for k in range(4):
            a(f"buffer_load_dwordx4 {vr(b+4*k,4)}, v{R_L16}, {sr(SRD_WS,4)}, s{S_U0} offen offset:{1024*k} sc1")
        a(f"""
        s_mov_b32 exec_hi, 0
        buffer_load_dwordx4 {vr(b+16,4)}, v{C+3}, {sr(SRD_WS,4)}, s{S_U0} offen sc1
        s_mov_b64 exec, -1
        """)

    def hcheck(b, extra, ok):
        for k in range(5):
            a(f"s_waitcnt vmcnt({extra+4-k})")
            if k == 4:
                a("s_mov_b32 exec_hi, 0")
            a(f"ds_write_b64 v{C+2}, {vr(b+4*k,2)} offset:{L_XN+256*k}")
            if k == 4:
                a("s_mov_b64 exec, -1")
            if k == 0:
                a(f"v_xor_b32 v{VTMP+3}, s{S_TAGF}, v{b+2}")
            else:
                a(f"v_bitop3_b32 v{VTMP+3}, v{VTMP+3}, v{b+4*k+2}, s{S_TAGF} bitop3:0xf6")
            a(f"v_bitop3_b32 v{VTMP+3}, v{VTMP+3}, v{b+4*k+3}, s{S_TAGF} bitop3:0xf6")
        a(f"""
        v_cmp_ne_u32 vcc, 0, v{VTMP+3}
        s_cbranch_vccz {ok}
        """)

    sets = [VW, VW + 20] if cfg.HPIPE else [VW]
    if cfg.HPIPE:
        a(f"""
        v_mov_b32 v{VW+36}, 0
        v_mov_b32 v{VW+37}, 0
        v_mov_b32 v{VW+38}, s{S_TAGF}
        v_mov_b32 v{VW+39}, s{S_TAGF}
        """)
        hissue(VW)
        a("s_sleep 2")
        a("L_HG:")
        hissue(VW + 20)
        hcheck(VW, 5, "L_HOK0")
        hissue(VW)
        hcheck(VW + 20, 5, "L_HOK1")
    else:
        a("L_HG:")
        hissue(VW)
        hcheck(VW, 0, "L_HOK0")
    a(f"""
    s_sub_u32 s{S_CNT}, s{S_CNT}, 1
    s_cbranch_scc1 L_HTO
    s_and_b32 s{S_T0}, s{S_CNT}, {cfg.GMASK}
    s_cmp_eq_u32 s{S_T0}, 0
    s_cselect_b32 s{S_U0}, 0, {WS_LOC}
    s_add_u32 s{S_U0}, s{S_U0}, s{S_U1}
    s_branch L_HG
    """)
    a("L_HTO:")
    a("s_waitcnt vmcnt(0)")
    for j, b in enumerate(sets):
        a(f"L_HOK{j}:")
        a(f"ds_write_b32 v{VZ}, v{C+6} offset:{L_XNF}")
        stamp(3)
        first = True
        for k in range(5):
            for d in range(2):
                c0 = "0" if first else f"v{vs}"
                c1 = "0" if first else f"v{vq}"
                first = False
                a(f"v_dot2_f32_bf16 v{vs}, v{b+4*k+d}, s{S_U2}, {c0}")
                a(f"v_dot2_f32_bf16 v{vq}, v{b+4*k+d}, v{b+4*k+d}, {c1}")
        if j < len(sets) - 1:
            a("s_branch L_HST")
    a("L_HST:")
    a(f"""
    s_nop 2
    v_add_f32_dpp v{vs}, v{vs}, v{vs} quad_perm:[1,0,3,2] {DPPM}
    v_add_f32_dpp v{vq}, v{vq}, v{vq} quad_perm:[1,0,3,2] {DPPM}
    s_nop 0
    v_add_f32_dpp v{vs}, v{vs}, v{vs} quad_perm:[2,3,0,1] {DPPM}
    v_add_f32_dpp v{vq}, v{vq}, v{vq} quad_perm:[2,3,0,1] {DPPM}
    s_nop 0
    v_add_f32_dpp v{vs}, v{vs}, v{vs} row_half_mirror {DPPM}
    v_add_f32_dpp v{vq}, v{vq}, v{vq} row_half_mirror {DPPM}
    s_nop 0
    v_add_f32_dpp v{vs}, v{vs}, v{vs} row_mirror {DPPM}
    v_add_f32_dpp v{vq}, v{vq}, v{vq} row_mirror {DPPM}
    v_mov_b32 v{vt}, v{vs}
    v_mov_b32 v{vt+1}, v{vq}
    s_nop 0
    v_permlane32_swap_b32 v{vs}, v{vt}
    v_permlane32_swap_b32 v{vq}, v{vt+1}
    v_add_f32 v{vs}, v{vs}, v{vt}
    v_add_f32 v{vq}, v{vq}, v{vt+1}
    v_mul_f32 v{vs}, {hex(f2u(1.0/576))}, v{vs}
    v_mul_f32 v{vq}, {hex(f2u(1.0/576))}, v{vq}
    v_fma_f32 v{vq}, -v{vs}, v{vs}, v{vq}
    v_max_f32 v{vq}, 0, v{vq}
    """)
    ln_tail(vs, vq, vt)
    a(f"""
    s_nop 0
    ds_write_b64 v{R_LS}, {vr(vs,2)} offset:{L_LNS}
    s_waitcnt lgkmcnt(0)
    """)
    stamp(4)
    a("s_barrier")
    endpgm()

    a("L_COMMW:")
    a(f"""
    s_lshl_b32 s{S_U1}, s{S_X}, 10
    s_add_u32 s{S_U1}, s{S_U1}, {WS_ST}
    s_add_u32 s{S_U0}, s{S_U1}, {WS_LOC}
    s_mov_b32 s{S_T2}, 0x3fb8aa3b
    v_lshlrev_b32 v{C}, 2, v0
    """)
    poll_ge(L_PROG, BIAS + P_V0 + (NPFW if cfg.STRIG > 4 * cfg.PFPOS else 0) + cfg.STRIG, VTMP, sleep=2)
    a(f"s_mov_b32 s{S_CNT}, {cfg.TMO_G}")
    a("L_SG:")
    a(f"""
    buffer_load_dwordx4 {vr(VB+8,4)}, v{R_L16}, {sr(SRD_WS,4)}, s{S_U0} offen sc1
    s_waitcnt vmcnt(0)
    """)
    chk4(VTMP + 1, VB + 8, True)
    chk_end(VTMP + 1, "L_SG", "L_SGD", toggle=(S_U0, S_U1))
    m, l, M, Ls = VB + 8, VB + 9, VB + 12, VB + 13
    a(f"""
    v_max_f32_dpp v{M}, v{m}, v{m} quad_perm:[1,0,3,2] {DPPM}
    s_nop 1
    v_max_f32_dpp v{M}, v{M}, v{M} quad_perm:[2,3,0,1] {DPPM}
    s_nop 1
    v_max_f32_dpp v{M}, v{M}, v{M} row_half_mirror {DPPM}
    v_sub_f32 v{m}, v{m}, v{M}
    v_mul_f32 v{m}, s{S_T2}, v{m}
    v_exp_f32 v{m}, v{m}
    s_nop 0
    v_mul_f32 v{Ls}, v{m}, v{l}
    s_nop 1
    v_add_f32_dpp v{Ls}, v{Ls}, v{Ls} quad_perm:[1,0,3,2] {DPPM}
    s_nop 1
    v_add_f32_dpp v{Ls}, v{Ls}, v{Ls} quad_perm:[2,3,0,1] {DPPM}
    s_nop 1
    v_add_f32_dpp v{Ls}, v{Ls}, v{Ls} row_half_mirror {DPPM}
    v_rcp_f32 v{Ls}, v{Ls}
    s_nop 0
    v_mul_f32 v{m}, v{m}, v{Ls}
    ds_write_b32 v{C}, v{m} offset:{L_WGT}
    ds_write_b32 v{VZ}, v{VONE} offset:{L_WF}
    """)
    stamp(3)
    ocopy()
    a(f"""
    s_lshl_b32 s{S_U2}, s{S_RI}, 12
    s_lshl_b32 s{S_T0}, s{S_X}, 9
    s_add_u32 s{S_U2}, s{S_U2}, s{S_T0}
    s_add_u32 s{S_U2}, s{S_U2}, {WS_YP}
    s_cmp_ge_u32 s{S_R}, 18
    s_cselect_b32 s{S_T0}, 18, 0
    s_cselect_b32 s{S_T1}, 256, 0
    s_sub_u32 s{S_T0}, s{S_R}, s{S_T0}
    s_lshr_b32 s{S_T2}, s{S_T0}, 1
    s_lshl_b32 s{S_T2}, s{S_T2}, 12
    s_and_b32 s{S_T0}, s{S_T0}, 1
    s_lshl_b32 s{S_T0}, s{S_T0}, 7
    s_add_u32 s{S_U0}, s{S_T0}, s{S_T1}
    s_add_u32 s{S_U0}, s{S_U0}, s{S_T2}
    s_add_u32 s{S_U0}, s{S_U0}, {WS_YP}
    v_lshrrev_b32 v{C+4}, 3, v0
    v_lshlrev_b32 v{C+4}, 9, v{C+4}
    v_and_b32 v{C+5}, 7, v0
    v_lshl_add_u32 v{C+4}, v{C+5}, 4, v{C+4}
    v_add_u32 v{C+5}, {L_ACCW}, v{R_L16}
    v_and_b32 v{C+1}, 31, v0
    v_mul_u32_u24 v{C+1}, 48, v{C+1}
    v_lshlrev_b32 v{C+3}, 1, v0
    s_lshl_b32 s{S_U3}, s{S_R}, 6
    """)
    gr_pre(S_CB)
    gr_zaddr(S_C2)
    srd(SRD_D, KA_OUT, 2304)
    a(f"""
    s_mov_b32 exec_hi, 0
    s_barrier
    """)
    for k in range(8):
        a(f"ds_read_b128 {vr(VW+4*k,4)}, v{C+5} offset:{512*k}")
    for k in range(1, 8):
        a(f"s_waitcnt lgkmcnt({7-k})")
        a(f"v_pk_add_f32 {vr(VW,2)}, {vr(VW,2)}, {vr(VW+4*k,2)}")
        a(f"v_pk_add_f32 {vr(VW+2,2)}, {vr(VW+2,2)}, {vr(VW+4*k+2,2)}")
    tag4(VW)
    a(f"""
    buffer_store_dwordx4 {vr(VW,4)}, v{R_L16}, {sr(SRD_WS,4)}, s{S_U2} offen sc1
    s_mov_b64 exec, -1
    """)
    stamp(7)
    a(f"""
    s_cmp_ge_u32 s{S_R}, 36
    s_cbranch_scc1 L_END
    v_mov_b32 v{C+6}, 2
    """)
    gather_reduce(1, C + 4, S_U0, L_ACCR + 4)
    a(f"""
    ds_write_b32 v{VZ}, v{C+6} offset:{L_WF}
    ds_read_b32 v{C+2}, v{C+1} offset:{L_ACCR + 36}
    s_waitcnt lgkmcnt(0)
    """)
    bf16r(C + 2, C + 2)
    a(f"v_add_f32 v{C+2}, v{C+2}, v{VXS}")
    bf16r(VXS, C + 2)
    a(f"""
    s_cmp_lg_u32 s{S_R}, 0
    s_cbranch_scc1 L_NOEP
    s_add_u32 s{S_T0}, s{S_EP}, 1
    v_mov_b32 v{C+2}, s{S_T0}
    s_mov_b64 exec, 1
    buffer_store_dword v{C+2}, v{VZ}, {sr(SRD_WS,4)}, 0 offen sc1
    s_mov_b64 exec, -1
    """)
    a("L_NOEP:")
    stamp(8)
    gather_reduce(2, R_L16, S_C2, L_ACCR)
    a(f"""
    s_mov_b32 exec_hi, 0
    s_barrier
    ds_read_b128 {vr(VW,4)}, v{C+1} offset:{L_ACCR}
    ds_read_b128 {vr(VW+4,4)}, v{C+1} offset:{L_ACCR+16}
    ds_read_b32 v{C+2}, v{C+1} offset:{L_ACCR+32}
    s_waitcnt lgkmcnt(1)
    v_pk_add_f32 {vr(VW,2)}, {vr(VW,2)}, {vr(VW+2,2)}
    v_pk_add_f32 {vr(VW+4,2)}, {vr(VW+4,2)}, {vr(VW+6,2)}
    v_pk_add_f32 {vr(VW,2)}, {vr(VW,2)}, {vr(VW+4,2)}
    s_waitcnt lgkmcnt(0)
    v_add_f32 v{C+2}, v{C+2}, v{VW}
    v_add_f32 v{C+2}, v{C+2}, v{VW+1}
    """)
    bf16r(C + 2, C + 2)
    a(f"""
    v_add_f32 v{C+2}, v{C+2}, v{VXS}
    v_cvt_pk_bf16_f32 v{C+2}, v{C+2}, v{C+2}
    buffer_store_short v{C+2}, v{C+3}, {sr(SRD_D,4)}, s{S_U3} offen
    s_mov_b64 exec, -1
    """)
    stamp(9)
    if cfg.DIAG:
        a(f"""
        s_cmp_lg_u32 s{S_R}, 0
        s_cbranch_scc1 L_END
        """)
    if cfg.DIAG:
        a(f"""
        s_memrealtime s[40:41]
        s_add_u32 s44, s{KA_WS}, {WS_DBG}
        s_addc_u32 s45, s{KA_WS+1}, 0
        s_load_dwordx8 s[16:23], s[44:45], 0 glc
        s_waitcnt lgkmcnt(0)
        """)
        for k in range(8):
            a(f"s_sub_u32 s{16+k}, s40, s{16+k}")
        a("s_mov_b32 s46, s16")
        a("s_mov_b32 s47, s16")
        for k in range(1, 8):
            a(f"s_max_u32 s46, s46, s{16+k}")
            a(f"s_min_u32 s47, s47, s{16+k}")
        if cfg.DIAG == 1:
            a("s_mul_i32 s46, s46, 4")
        else:
            a("s_sub_u32 s46, s46, s47")
            a("s_mul_i32 s46, s46, 10")
        a("s_min_u32 s46, s46, 20000")
        a("L_DG:")
        a("""
        s_memrealtime s[42:43]
        s_waitcnt lgkmcnt(0)
        s_sub_u32 s47, s42, s40
        s_cmp_lt_u32 s47, s46
        s_cbranch_scc1 L_DG
        """)
    endpgm()
    a("s_nop 0 ;FORCEHOP")
    a("L_END:")
    if cfg.STAMP:
        a("L_FLUSH:")
        a(f"""
        s_mul_i32 s76, s{S_WG}, 640
        s_lshl_b32 s77, s{S_WAVE}, 6
        s_add_u32 s76, s76, s77
        s_add_u32 s76, s76, {WS_DBG}
        s_mov_b64 exec, 1
        s_waitcnt lgkmcnt(0)
        """)
        for k in range(12):
            a(f"""
            v_mov_b32 v1, s{80+2*k if k < 11 else 78}
            buffer_store_dword v1, v2, {sr(SRD_WS,4)}, s76 offen offset:{4*k}
            """)
    a("L_EXIT:")
    a("s_endpgm")
    if cfg.MOVEC:
        L = a.lines
        i0 = L.index(("l", "L_COMM:"))
        i1 = L.index(("c", "; MOVE_END"))
        blk = L[i0:i1]
        rest = L[:i0] + L[i1:]
        j = rest.index(("c", "; MOVE_HERE"))
        a.lines = rest[:j] + blk + rest[j:]
    return a


HEADER_SRC = os.path.join(HERE, "..", "cdna_kernels", NAME + ".s.ref")


def render(a, cfg, hops=None):
    head = []
    for line in open(HEADER_SRC):
        if line.startswith("; @launch"):
            head.append(f"; @launch grid=(256,1,1) block=(640,1,1) lds={L_END}\n")
            break
        head.append(line)
    out = ["".join(head)]
    out.append(f""".amdgcn_target "amdgcn-amd-amdhsa--gfx950"
.text
.globl {NAME}_kernel
.p2align 8
.type {NAME}_kernel,@function
{NAME}_kernel:
""")
    n = 0
    for kind, t in a.lines:
        if kind == "i":
            if hops and n in hops:
                for h in hops[n]:
                    out.append(h + "\n")
            out.append("    " + t + "\n")
            n += 1
        elif kind in ("l", "c"):
            out.append(("" if kind == "l" else "    ") + t + "\n")
    out.append("L_CODE_END:\n")
    if cfg.HOPS and not hops:
        for r in range(8):
            out.append(f"HOPR_{r}:\n")
        out.append("    s_endpgm\n")
    out.append(f""".section .rodata,"a"
.p2align 6
.amdhsa_kernel {NAME}_kernel
  .amdhsa_next_free_vgpr 168
  .amdhsa_next_free_sgpr {102 if cfg.STAMP else 78}
  .amdhsa_accum_offset 168
  .amdhsa_group_segment_fixed_size 0
  .amdhsa_kernarg_size 96
  .amdhsa_user_sgpr_count 2
  .amdhsa_user_sgpr_kernarg_segment_ptr 1
  .amdhsa_system_sgpr_workgroup_id_x 1
.end_amdhsa_kernel
""")
    return "".join(out)


def sizes_of(text):
    tmp = os.path.join(HERE, "_tmp.s")
    open(tmp, "w").write(text)
    subprocess.check_call(["clang", "-x", "assembler", "-target", "amdgcn-amd-amdhsa",
                           "-mcpu=gfx950", "-c", tmp, "-o", tmp + ".o"])
    dis = subprocess.check_output(["llvm-objdump", "-d", "--mcpu=gfx950", tmp + ".o"]).decode()
    sz = []
    for line in dis.splitlines():
        m = re.search(r"// ([0-9A-F]{12}): ((?:[0-9A-F]{8} ?)+)", line)
        if m:
            sz.append(4 * len(m.group(2).split()))
    return sz


def generate(cfg):
    a = build(cfg)
    if not cfg.HOPS:
        return render(a, cfg)
    sz = sizes_of(render(a, cfg))
    ins = [t for k, t in a.lines if k == "i"]
    idx = 0
    ladder = set()
    inl = False
    start = None
    for kind, t in a.lines:
        if kind == "i":
            if inl:
                ladder.add(idx)
            if t == "s_barrier":
                if start is None:
                    start = idx
                if inl == "comm":
                    inl = False
            idx += 1
        elif kind == "l":
            if t == "L_RESUME:":
                inl = False
                ladder.add(idx)
            elif t == "L_COMP:":
                inl = "comp"
            elif t == "L_COMM:":
                inl = "comm"
            elif t in ("L_EXIT:", "L_END:"):
                inl = "end"
    pos = []
    acc = 60
    for n in range(start, len(ins)):
        if (acc + sz[n] > 60 or 'FORCEHOP' in ins[n]) and n not in ladder:
            pos.append(n)
            acc = 0
        acc += sz[n]
    per = (len(pos) + 7) // 8
    hops = {}
    for k, n in enumerate(pos):
        labs = [f"HOP_{k}:"]
        if k % per == 0:
            labs.append(f"HOPR_{k // per}:")
        last = (k % per == per - 1) or k == len(pos) - 1
        tgt = "L_RESUME" if last else f"HOP_{k+1}"
        hops[n] = labs + [f"    s_cbranch_execz {tgt}"]
    assert (len(pos) - 1) // per == 7, (len(pos), per)
    return render(a, cfg, hops)


if __name__ == "__main__":
    cfg = Cfg()
    out = os.path.join(HERE, "..", "cdna_kernels", NAME + ".s")
    for arg in sys.argv[1:]:
        if arg.startswith("out="):
            out = arg[4:]
        else:
            k, v = arg.split("=")
            assert hasattr(cfg, k), k
            setattr(cfg, k, v if k == 'SCHED' else int(v, 0))
    text = generate(cfg)
    open(out, "w").write(text)
    print("wrote", out, len(text), "bytes")
```
